```python
import torch

def _softmax(x, axis=-1):
    return torch.softmax(x, dim=axis)
def _gelu(x):
    return torch.nn.functional.gelu(x, approximate="tanh")
def _silu(x):
    return torch.nn.functional.silu(x)
def _sigmoid(x):
    return torch.sigmoid(x)
def _layernorm(x, axis=-1, eps=1e-5):
    m = x.mean(dim=axis, keepdim=True)
    v = x.var(dim=axis, keepdim=True, unbiased=False)
    return (x - m) / torch.sqrt(v + eps)
def _scatter_add(tgt, idx, src, axis=0):
    return tgt.clone().index_add_(axis, idx, src)
def _segment_sum(src, seg, n):
    out = torch.zeros((n,) + src.shape[1:], dtype=src.dtype)
    return out.index_add_(0, seg, src)
def _pad(x, pw):
    flat = tuple(v for pair in reversed(pw) for v in pair)
    return torch.nn.functional.pad(x, flat)

kernel_name = 'interleave_layers__spectral_gfnet__softmax_full_mha__prompt'

def setup_inputs():

    _w = (lambda a: (lambda t: t.to(torch.bfloat16) if t.is_floating_point() else t)(torch.as_tensor(a)))
    def _A_setup():
        B, S, D = 1, 2048, 640
        Df = D // 2 + 1
        return {
            "x": _w((lambda *s: torch.randn(*s, dtype=torch.bfloat16) * 0.05)(B, S, D)),
            "w_r": _w((lambda *s: torch.randn(*s, dtype=torch.bfloat16) * 1.6)(S, Df) * 0.02),
            "w_i": _w((lambda *s: torch.randn(*s, dtype=torch.bfloat16) * 1.6)(S, Df) * 0.02),
        }
    _A_in = _A_setup()

    def _B_setup():
        B, S, D = 1, 2048, 640
        return {
            "x": _w((lambda *s: torch.randn(*s, dtype=torch.bfloat16) * 0.05)(B, S, D)),
            "wqkv": _w((lambda *s: torch.randn(*s, dtype=torch.bfloat16) * 0.05)(D, 3 * D)),
            "wo": _w((lambda *s: torch.randn(*s, dtype=torch.bfloat16) * 0.05)(D, D)),
        }
    _B_in = _B_setup()

    return {
        "A_x": _A_in["x"],
        "A_w_r": _A_in["w_r"],
        "A_w_i": _A_in["w_i"],
        "B_x": _B_in["x"],
        "B_wqkv": _B_in["wqkv"],
        "B_wo": _B_in["wo"],
    }

def reference(A_x, A_w_r, A_w_i, B_x, B_wqkv, B_wo):
    def _A_ref(x, w_r, w_i):
        B, S, D = x.shape
        X = (lambda x, axes=(-2,-1): torch.fft.rfft2(x.float(), dim=axes))(x, axes=(-2, -1))
        W = w_r + 1j * w_i
        X = X * W
        y = (lambda x, s, axes=(-2,-1): torch.fft.irfft2(x, s=s, dim=axes).to(torch.bfloat16))(X, (S, D), axes=(-2, -1))
        return y

    def _B_ref(x, wqkv, wo):
        B, S, D = x.shape
        H = 32; Dh = D // H
        qkv = (lambda x, *d: x.permute(*d))((x @ wqkv).reshape(B, S, 3, H, Dh), 2, 0, 3, 1, 4)
        q, k, v = qkv[0], qkv[1], qkv[2]
        scale = Dh ** -0.5
        scores = torch.einsum("bhqd,bhkd->bhqk", q, k) * scale
        p = _softmax(scores, axis=-1)
        o = torch.einsum("bhqk,bhkd->bhqd", p, v)
        return (lambda x, *d: x.permute(*d))(o, 0, 2, 1, 3).reshape(B, S, D) @ wo

    x = A_x
    x = x + _A_ref(_layernorm(x, axis=-1), A_w_r, A_w_i)
    x = x + _B_ref(_layernorm(x, axis=-1), B_wqkv, B_wo)
    x = x + _A_ref(_layernorm(x, axis=-1), A_w_r, A_w_i)
    x = x + _B_ref(_layernorm(x, axis=-1), B_wqkv, B_wo)
    return x
```

```python
import re

REG_RE = re.compile(r'\b([vas])(\d+)\b|\b([vas])\[(\d+):(\d+)\]|\b(vcc|exec|m0|scc)\b')
TRANS = ('v_exp_', 'v_log_', 'v_rcp_', 'v_rsq_', 'v_sqrt_', 'v_sin_', 'v_cos_')


def regs_of(tok):
    out = set()
    for m in REG_RE.finditer(tok):
        if m.group(1):
            out.add((m.group(1), int(m.group(2))))
        elif m.group(3):
            for i in range(int(m.group(4)), int(m.group(5)) + 1):
                out.add((m.group(3), i))
        else:
            out.add((m.group(6), 0))
    return out


def split_ops(s):
    ops, cur, depth = [], '', 0
    for ch in s:
        if ch == '[': depth += 1
        if ch == ']': depth -= 1
        if ch == ',' and depth == 0:
            ops.append(cur.strip()); cur = ''
        else:
            cur += ch
    if cur.strip(): ops.append(cur.strip())
    return ops


class Ins:
    __slots__ = ('text', 'op', 'kind', 'wr', 'rd', 'passes', 'srcc', 'srcab', 'dpp', 'trans', 'dot', 'wide_store',
                 'lds_dma', 'nops', 'label', 'target', 'sdata', 'perm', 'rdlane', 'dfirst', 'opsel_dst')

    def __init__(self, text):
        self.text = text
        t = text.split(';')[0].strip()
        self.wr = set(); self.rd = set(); self.passes = 0; self.srcc = set(); self.srcab = set()
        self.dpp = False; self.trans = False; self.dot = False; self.wide_store = False; self.lds_dma = False
        self.nops = 1; self.label = None; self.target = None; self.sdata = set(); self.perm = False
        self.rdlane = False; self.dfirst = None; self.opsel_dst = False
        if t.endswith(':'):
            self.kind = 'label'; self.label = t[:-1]; self.op = ''; self.nops = 0; return
        if not t or t.startswith('.'):
            self.kind = 'dir'; self.op = ''; self.nops = 0; return
        parts = t.split(None, 1)
        op = parts[0]; self.op = op
        rest = parts[1] if len(parts) > 1 else ''
        ops = split_ops(rest)
        mods = ''
        if ops:
            lp = ops[-1].split(None, 1)
            if len(lp) > 1 and not lp[0].endswith(('(',)):
                ops[-1] = lp[0]; mods = lp[1]
        R = [regs_of(o) for o in ops]
        if op.startswith('v_mfma'):
            self.kind = 'mfma'
            self.passes = 8 if '32x32' in op else 4
            self.wr = R[0]; self.srcab = R[1] | R[2]; self.srcc = R[3]; self.rd = self.srcab | self.srcc
            self.dfirst = (min(R[0]), len(R[0]))
        elif op.startswith('v_'):
            self.kind = 'valu'
            self.trans = op.startswith(TRANS)
            self.dot = op.startswith('v_dot')
            self.dpp = 'dpp' in op or 'row_' in mods or 'quad_perm' in mods
            if op.startswith('v_cmp'):
                self.wr = R[0]; self.rd = set().union(*R[1:])
            elif op.startswith('v_permlane') and 'swap' in op:
                self.wr = R[0] | R[1]; self.rd = R[0] | R[1]; self.perm = True
            elif op.startswith(('v_add_co', 'v_sub_co', 'v_addc_co', 'v_subb_co', 'v_mad_u64', 'v_div_scale')):
                self.wr = R[0] | R[1]; self.rd = set().union(*R[2:])
            elif op == 'v_nop':
                pass
            else:
                self.wr = R[0]; self.rd = set().union(*R[1:]) if len(R) > 1 else set()
                if op.startswith(('v_fmac', 'v_mac', 'v_dot2c', 'v_pk_fmac', 'v_fma_mixhi', 'v_fma_mixlo', 'v_writelane')) or self.dpp or 'sdwa' in op:
                    self.rd |= R[0]
                if op.startswith(('v_fma_mixhi',)) or 'dst_sel' in mods:
                    self.opsel_dst = True
                if op.startswith('v_cndmask') and len(R) == 3:
                    self.rd |= {('vcc', 0)}
            self.rdlane = op.startswith(('v_readfirstlane', 'v_readlane'))
        elif op.startswith('ds_'):
            self.kind = 'ds'
            if op.startswith(('ds_read', 'ds_bpermute', 'ds_permute', 'ds_swizzle')):
                self.wr = R[0]; self.rd = set().union(*R[1:])
            else:
                self.rd = set().union(*R)
        elif op.startswith(('buffer_', 'global_')):
            self.kind = 'vmem'
            is_lds = ' lds' in (' ' + mods) or '_lds_' in op
            if is_lds:
                self.lds_dma = True; self.rd = set().union(*R) | {('m0', 0)}
            elif 'load' in op:
                self.wr = R[0]; self.rd = set().union(*R[1:])
                if 'd16' in op: self.rd |= set()
            else:
                self.rd = set().union(*R)
                data = R[0] if op.startswith('buffer_') else R[1]
                if 'x4' in op or 'x3' in op:
                    self.wide_store = True; self.sdata = data
        elif op.startswith('s_'):
            self.kind = 'salu'
            if op == 's_nop':
                self.nops = int(ops[0], 0) + 1
            elif op.startswith(('s_cbranch', 's_branch')):
                self.kind = 'branch'; self.target = ops[0]
            elif op.startswith(('s_load', 's_buffer_load', 's_memtime', 's_memrealtime')):
                self.kind = 'smem'; self.wr = R[0]; self.rd = set().union(*R[1:]) if len(R) > 1 else set()
            elif op.startswith(('s_waitcnt', 's_barrier', 's_endpgm', 's_setprio', 's_sleep')):
                pass
            elif op.startswith('s_cmp') or op.startswith('s_bitcmp'):
                self.rd = set().union(*R)
            else:
                self.wr = R[0]; self.rd = set().union(*R[1:]) if len(R) > 1 else set()
        else:
            raise ValueError("unknown instruction: " + text)


def need(p, c):
    n = 0
    vw = {r for r in p.wr if r[0] in 'va' and r[0] != 'vcc'}
    sw = {r for r in p.wr if r[0] in ('s', 'vcc')}
    if p.kind == 'valu':
        if c.kind == 'mfma' and vw & c.rd: n = max(n, 2)
        if p.trans and c.kind == 'valu' and not c.trans and vw & (c.rd | c.wr): n = max(n, 1)
        if p.trans and c.kind in ('vmem', 'ds') and vw & c.rd: n = max(n, 1)
        if c.kind == 'valu' and c.rdlane and vw & c.rd: n = max(n, 1)
        if c.kind == 'valu' and (c.dpp or c.perm) and vw & c.rd: n = max(n, 2)
        if c.kind == 'vmem' and sw & c.rd: n = max(n, 5)
        if c.kind == 'valu' and sw & c.rd: n = max(n, 4 if c.rdlane else 2)
        if p.opsel_dst and c.kind in ('valu', 'mfma', 'vmem', 'ds') and vw & (c.rd | c.wr): n = max(n, 1)
        if p.dot and vw & (c.rd | c.wr):
            if not (c.op == p.op and not (vw & (c.rd - c.wr)) ) : n = max(n, 3)
    elif p.kind == 'mfma':
        big = p.passes == 8
        if c.kind == 'mfma':
            if p.wr & c.srcab: n = max(n, 12 if big else 8)
            if p.wr & c.srcc:
                if not (c.srcc == p.wr and c.passes == p.passes): n = max(n, 10 if big else 6)
            elif p.wr & c.wr: n = max(n, 12 if big else 8)
        elif c.kind in ('valu', 'vmem', 'ds'):
            if p.wr & (c.rd | c.wr): n = max(n, 12 if big else 8)
        if c.kind == 'valu' and p.srcc & c.wr: n = max(n, 7 if big else 3)
    elif p.kind == 'salu':
        if ('m0', 0) in p.wr and c.lds_dma: n = max(n, 1)
    elif p.kind == 'vmem' and p.wide_store:
        if p.sdata & c.wr: n = max(n, 2 if c.kind in ('valu', 'mfma') else 1)
    return n


class Kern:
    def __init__(self, name, vgprs=128, sgprs=96, agprs=0):
        self.name = name; self.lines = []; self.vgprs = vgprs; self.sgprs = sgprs; self.agprs = agprs
        self.nlab = 0

    def __call__(self, s):
        for ln in s.split('\n'):
            ln = ln.strip()
            if ln: self.lines.append(ln)

    def lab(self, base='L'):
        self.nlab += 1
        return f".L{self.name}_{base}{self.nlab}"

    def finalize(self, check=True):
        ins = [Ins(l) for l in self.lines]
        at_branch = {}
        for it in range(3):
            out = []; hist = []
            newb = {}
            for i in ins:
                if i.kind == 'dir':
                    out.append(i); continue
                if i.kind == 'label':
                    for (p, a) in at_branch.get(i.label, []) + newb.get(i.label, []):
                        hist.append([p, a])
                    out.append(i); continue
                req = 0
                for p, a in hist:
                    r = need(p, i) - a
                    if r > req: req = r
                if req > 0:
                    nop = Ins(f"s_nop {req-1}")
                    out.append(nop)
                    for h in hist: h[1] += req
                out.append(i)
                for h in hist: h[1] += i.nops
                hist = [h for h in hist if h[1] < 13]
                if i.kind in ('valu', 'mfma', 'salu', 'vmem'):
                    hist.append([i, 0])
                if i.kind == 'branch':
                    newb.setdefault(i.target, []).extend([(p, a) for p, a in hist])
                    if i.op == 's_branch': hist = []
                if i.op == 's_endpgm': hist = []
            at_branch = newb
            final = out
        if check: self.check_waits(final)
        mx = {'v': -1, 's': -1, 'a': -1}
        for i in final:
            for r in i.wr | i.rd:
                if r[0] in mx: mx[r[0]] = max(mx[r[0]], r[1])
        assert mx['v'] < self.vgprs, (self.name, mx)
        assert mx['s'] < self.sgprs, (self.name, mx)
        assert mx['a'] < max(self.agprs, 0) or mx['a'] < 0, (self.name, mx)
        self.maxregs = mx
        return [i.text for i in final]

    def check_waits(self, final):
        vm = []; lg = []
        for i in final:
            if i.kind in ('label', 'dir'): continue
            if i.op == 's_endpgm' or i.op == 's_branch':
                vm = []; lg = []; continue
            if i.op == 's_waitcnt':
                m = re.search(r'vmcnt\((\d+)\)', i.text)
                if m:
                    n = int(m.group(1)); vm = vm[len(vm)-n:] if n < len(vm) else vm
                    if n == 0: vm = []
                m = re.search(r'lgkmcnt\((\d+)\)', i.text)
                if m:
                    n = int(m.group(1))
                    if n == 0: lg = []
                    elif any(x[2] for x in lg):
                        pass
                    elif n < len(lg): lg = lg[len(lg)-n:]
                continue
            touched = i.rd | i.wr
            for q in (vm, lg):
                for regs, text, _ in q:
                    if regs & touched:
                        if 'd16' in i.op and 'd16' in text and not (regs & i.rd): continue
                        if i.op == 'buffer_load_dword' and text.startswith('buffer_load_dword ') and not (regs & i.rd): continue
                        raise RuntimeError(f"{self.name}: waitcnt violation: '{i.text}' touches pending '{text}'")
            if i.kind == 'vmem': vm.append((set(i.wr), i.text, False))
            if i.kind == 'ds': lg.append((set(i.wr), i.text, False))
            if i.kind == 'smem': lg.append((set(i.wr), i.text, True))
            assert len(vm) < 200

    def text(self):
        body = self.finalize()
        return (f".p2align 8\n.globl {self.name}_kernel\n.type {self.name}_kernel,@function\n{self.name}_kernel:\n"
                + "\n".join(body) + "\n")

    def desc(self):
        acc = (self.vgprs + 3) // 4 * 4
        return f""".p2align 6
.amdhsa_kernel {self.name}_kernel
  .amdhsa_next_free_vgpr {acc + self.agprs}
  .amdhsa_next_free_sgpr {self.sgprs}
  .amdhsa_accum_offset {acc}
  .amdhsa_group_segment_fixed_size 0
  .amdhsa_kernarg_size 72
  .amdhsa_user_sgpr_count 2
  .amdhsa_user_sgpr_kernarg_segment_ptr 1
  .amdhsa_system_sgpr_workgroup_id_x 1
.end_amdhsa_kernel
"""


def vr(a, n=1):
    return f"v{a}" if n == 1 else f"v[{a}:{a+n-1}]"


def sr(a, n=1):
    return f"s{a}" if n == 1 else f"s[{a}:{a+n-1}]"
```

```python
import numpy as np
from asmlib import *
from layout import *
from gen import getpc, srd
AT_LDS = 163840

def attention(k, sid=2):
    SB = 16; P = 48; NM = 56; O = 88; KB = 120; VB = 140; Q = 172; AD = 188; MX = 200
    k("s_load_dwordx2 s[4:5], s[0:1], 64")
    k("v_lshrrev_b32 v1, 6, v0"); k("v_and_b32 v2, 63, v0")
    k("v_readfirstlane_b32 s22, v1")
    k(f"s_and_b32 s20, s{sid}, 7"); k("s_lshl_b32 s20, s20, 2"); k(f"s_bfe_u32 s21, s{sid}, 0x20003"); k("s_add_u32 s20, s20, s21")
    k(f"s_lshr_b32 s21, s{sid}, 5")
    k("s_and_b32 s23, s22, 3"); k("s_lshr_b32 s24, s22, 2")
    k("v_lshlrev_b32 v3, 4, v2")
    k("v_and_b32 v4, 31, v2"); k("v_lshrrev_b32 v5, 5, v2")
    k("v_lshlrev_b32 v6, 3, v4")
    k("s_lshl_b32 s25, s21, 3"); k("s_lshl_b32 s26, s23, 1"); k("s_add_u32 s25, s25, s26")
    k("s_add_u32 s26, s25, s24"); k("s_xor_b32 s27, s26, 1")
    k("s_lshl_b32 s28, s20, 6")
    for t in range(2):
        k(f"s_add_u32 s29, s28, s{26+t}")
        k(f"s_lshl_b32 s{30+t}, s29, 10"); k(f"s_add_u32 s{30+t}, s{30+t}, {Q16}")
        k(f"s_lshl_b32 s{32+t}, s29, 8"); k(f"s_add_u32 s{32+t}, s{32+t}, {Q4}")
    k("s_mul_i32 s29, s20, 163840"); k(f"s_add_u32 s29, s29, {KV}")
    k("s_lshl_b32 s34, s22, 10")
    k("s_mov_b32 s36, 0x000fffff"); k("s_mov_b32 s37, 0x000fffff")
    k("s_mov_b32 s38, 0")
    k("s_mul_i32 s35, s24, 5120")
    k(f"v_add_u32 v{AD}, s35, v3")
    k(f"v_lshl_add_u32 v{AD+1}, v2, 3, s35")
    k("v_mad_u32_u24 v7, v5, 20, v4"); k(f"v_lshl_add_u32 v{AD+2}, v7, 4, s35")
    for sg in range(1, 3):
        for j in range(3): k(f"v_add_u32 v{AD+3*sg+j}, 61440, v{AD+3*(sg-1)+j}")
    k("v_cmp_eq_u32 vcc, 20, v4"); k("v_cmp_eq_u32 s[40:41], 24, v4"); k("s_or_b64 vcc, vcc, s[40:41]")
    k("v_mov_b32 v7, 0x3f803f80"); k(f"v_cndmask_b32 v{VB}, 0, v7, vcc")
    for r in range(1, 32): k(f"v_mov_b32 v{VB+r}, v{VB}")
    k("s_waitcnt lgkmcnt(0)")
    srd(k, 8, 4, "s29", 163840)
    srd(k, 16, 4, 0, WS_END)
    def dma(r): return [f"s_add_u32 m0, s34, {r*8192}", "buffer_load_dwordx4 v3, s[8:11], m0 offen lds"]
    for t in range(2):
        k(f"buffer_load_dwordx4 {vr(Q+8*t,4)}, v3, s[16:19], s{30+t} offen")
        k(f"buffer_load_dwordx2 {vr(Q+8*t+4,2)}, v6, s[16:19], s{32+t} offen")
    for r in range(5):
        for x in dma(r): k(x)
    k("v_cmp_eq_u32 vcc, 0, v5")
    k("s_waitcnt vmcnt(5)")
    for t in range(2):
        for j in range(2):
            k(f"v_cndmask_b32 v{Q+8*t+6+j}, v{Q+8*t+4+j}, 0, vcc")
            k(f"v_cndmask_b32 v{Q+8*t+4+j}, 0, v{Q+8*t+4+j}, vcc")
    k("s_waitcnt vmcnt(3)"); k("s_barrier")
    def kreads(it):
        sg, o = it // 6, (it % 6)*10240; b = KB+10*(it % 2)
        return [f"ds_read_b128 {vr(b,4)}, v{AD+3*sg} offset:{o}", f"ds_read_b64 {vr(b+8,2)}, v{AD+3*sg+1} offset:{o+2048}",
                f"ds_read_b128 {vr(b+4,4)}, v{AD+3*sg} offset:{o+1024}"]
    def vreads(it):
        sg, o = it // 6, (it % 6)*10240; b = VB+16*(it % 2)
        return ["s_mov_b64 exec, s[36:37]"] + [f"ds_read_b128 {vr(b+4*j,4)}, v{AD+3*sg+2} offset:{o+2560+640*j}" for j in range(4)] + ["s_mov_b64 exec, -1"]
    def s16(d, kb, kt, t, c): return f"v_mfma_f32_32x32x16_bf16 {vr(d,16)}, {vr(kb+4*kt,4)}, {vr(Q+8*t,4)}, {c}"
    def s8(d, kb, kt, t): return f"v_mfma_f32_32x32x8bf16_1k {vr(d,16)}, {vr(kb+8,2)}, {vr(Q+8*t+4+2*kt,2)}, {vr(d,16)}"
    def maxinto(m, d, first):
        if first: k(f"v_max_f32 v{m}, v{d}, v{d+1}")
        else: k(f"v_max3_f32 v{m}, v{d}, v{d+1}, v{m}")
        for j in range(1, 8): k(f"v_max3_f32 v{m}, v{d+2*j}, v{d+2*j+1}, v{m}")
    def fill_negm():
        k(f"v_permlane32_swap_b32 v{MX}, v{MX+1}")
        k(f"v_max_f32 v{MX}, v{MX}, v{MX+1}")
        k(f"v_mov_b32 v{MX+1}, v{MX}")
        k(f"v_permlane32_swap_b32 v{MX}, v{MX+1}")
        for t in range(2):
            k(f"v_sub_f32 v{NM+16*t}, 0, v{MX+t}"); k(f"v_sub_f32 v{NM+16*t+1}, 0, v{MX+t}")
        for j in range(1, 8):
            for t in range(2): k(f"v_mov_b64 {vr(NM+16*t+2*j,2)}, {vr(NM+16*t,2)}")
    for x in kreads(0)[:2]: k(x)
    k("s_waitcnt lgkmcnt(0)")
    for t in range(2): k(s16(SB+16*t, KB, 0, t, '0'))
    for t in range(2): k(s8(SB+16*t, KB, 0, t))
    for t in range(2): maxinto(MX+t, SB+16*t, True)
    fill_negm()
    lmain = k.lab('main'); k(f"{lmain}:")
    for x in kreads(0) + vreads(0): k(x)
    k("s_waitcnt lgkmcnt(5)")
    k(s16(SB, KB, 0, 0, vr(NM, 16))); k(s8(SB, KB, 0, 0))
    NT = 64
    def tinfo(i): return i // 4, (i >> 1) & 1, i & 1
    def pv(i, h):
        it, kt, t = tinfo(i)
        c = '0' if (i < 2 and h == 0) else vr(O+16*t, 16)
        return f"v_mfma_f32_32x32x16_bf16 {vr(O+16*t,16)}, {vr(VB+16*(it % 2)+8*kt+4*h,4)}, {vr(P+4*h,4)}, {c}"
    rnd = 5
    bars = {1: 2, 2: 4, 4: 11, 9: 19}
    issued = 5
    have = 1
    for it_ in range(16):
        have = bars.get(it_, have); assert (have+1)*8192 >= (it_+1)*10240
    for i in range(NT):
        it, kt, t = tinfo(i)
        sb = SB+16*(i % 2); sn = SB+16*((i+1) % 2)
        e = lambda r: k(f"v_exp_f32 v{sb+r}, v{sb+r}")
        c = lambda j: k(f"v_cvt_pk_bf16_f32 v{P+j}, v{sb+2*j}, v{sb+2*j+1}")
        nx = i+1 < NT
        if nx:
            it2, kt2, t2 = tinfo(i+1); kb2 = KB+10*(it2 % 2)
            if i == 1: k("s_waitcnt lgkmcnt(7)")
            if i % 4 == 3: k("s_waitcnt lgkmcnt(0)")
            k(s16(sn, kb2, kt2, t2, vr(NM+16*t2, 16)))
        e(0)
        if i > 0: k(pv(i-1, 1))
        if i % 4 == 0 and it+1 < 16:
            if it+1 in bars:
                lb = k.lab('nb')
                k("s_cmp_lg_u32 s38, 0"); k(f"s_cbranch_scc1 {lb}")
                assert issued-1-bars[it+1] >= 0
                k(f"s_waitcnt vmcnt({issued-1-bars[it+1]})"); k("s_barrier")
                k(f"{lb}:")
            for x in kreads(it+1) + vreads(it+1): k(x)
        e(1); e(2); e(3)
        if nx: k(s8(sn, kb2, kt2, t2))
        e(4); e(5); c(0); e(6); c(1); e(7); c(2)
        if issued < 20:
            for x in dma(issued): k(x)
            issued += 1
        e(8); c(3); e(9); e(10)
        if i == 0: k("s_waitcnt lgkmcnt(7)")
        k(pv(i, 0))
        e(11); e(12); c(4); e(13); c(5); e(14); e(15); c(6); c(7)
    k(pv(NT-1, 1))
    k("v_cmp_eq_u32 vcc, 0, v5")
    for t in range(2): k(f"v_cndmask_b32 v{O+16*t+12}, v{O+16*t+8}, v{O+16*t+12}, vcc")
    k(f"v_add_f32 v7, v{O+12}, v{O+28}")
    k("v_cmp_nle_f32 vcc, v7, 0x5f000000") if False else k("v_mov_b32 v8, 0x5f000000")
    k("v_cmp_nle_f32 vcc, v7, v8")
    lfb = k.lab('fb'); lcomb = k.lab('comb')
    k("s_cmp_lg_u32 s38, 0"); k(f"s_cbranch_scc1 {lcomb}")
    k(f"s_cbranch_vccnz {lfb}")
    k(f"{lcomb}:")
    k(f"v_mov_b32 v{O+16+13}, v{NM+16}")
    k("s_lshl_b32 s35, s22, 12"); k("v_add_u32 v8, s35, v3"); k("s_xor_b32 s35, s35, 0x4000"); k("v_add_u32 v9, s35, v3")
    k("s_waitcnt vmcnt(0) lgkmcnt(0)"); k("s_barrier")
    for j in range(4): k(f"ds_write_b128 v9, {vr(O+16+4*j,4)} offset:{1024*j}")
    k("s_mul_i32 s28, s26, 40960"); k(f"s_add_u32 s28, s28, {AFO}")
    k("s_lshl_b32 s29, s20, 10"); k("s_add_u32 s29, s29, s28")
    k("s_lshr_b32 s30, s20, 1"); k("s_lshl_b32 s30, s30, 9"); k("s_and_b32 s31, s20, 1"); k("s_lshl_b32 s31, s31, 3")
    k("s_add_u32 s30, s30, s31"); k("s_add_u32 s30, s30, s28"); k("s_add_u32 s30, s30, 32768")
    k("s_waitcnt lgkmcnt(0)"); k("s_barrier")
    X = SB
    k(f"ds_read_b128 {vr(X+12,4)}, v8 offset:3072")
    for j in range(3): k(f"ds_read_b128 {vr(X+4*j,4)}, v8 offset:{1024*j}")
    k("s_waitcnt lgkmcnt(3)")
    k(f"v_min_f32 v10, v{NM}, v{X+13}")
    k(f"v_sub_f32 v11, v10, v{NM}"); k(f"v_sub_f32 v12, v10, v{X+13}")
    k("v_exp_f32 v11, v11"); k("v_exp_f32 v12, v12")
    k(f"v_mul_f32 v10, v11, v{O+12}"); k(f"v_fmac_f32 v10, v12, v{X+12}")
    k("v_rcp_f32 v10, v10")
    k("v_mul_f32 v11, v11, v10"); k("v_mul_f32 v12, v12, v10")
    for r in range(12): k(f"v_mul_f32 v{O+r}, v11, v{O+r}")
    k("s_waitcnt lgkmcnt(0)")
    for r in range(12): k(f"v_fmac_f32 v{O+r}, v12, v{X+r}")
    for q in range(6): k(f"v_cvt_pk_bf16_f32 v{P+q}, v{O+2*q}, v{O+2*q+1}")
    k(f"buffer_store_dwordx4 {vr(P,4)}, v3, s[16:19], s29 offen")
    k("s_mov_b64 exec, 0xffffffff") if False else (k("s_mov_b32 exec_hi, 0"))
    k(f"buffer_store_dwordx2 {vr(P+4,2)}, v3, s[16:19], s30 offen")
    k("s_endpgm")
    k(f"{lfb}:")
    k("s_mov_b32 s38, 1"); k("s_mov_b32 s39, 0")
    k(f"v_mov_b32 v10, v{AD}"); k(f"v_mov_b32 v11, v{AD+1}")
    k(f"v_mov_b32 v{MX}, 0xff800000"); k(f"v_mov_b32 v{MX+1}, 0xff800000")
    ll = k.lab('fl'); k(f"{ll}:")
    k(f"ds_read_b128 {vr(KB,4)}, v10"); k(f"ds_read_b64 {vr(KB+8,2)}, v11 offset:2048"); k(f"ds_read_b128 {vr(KB+4,4)}, v10 offset:1024")
    k("s_waitcnt lgkmcnt(0)")
    for kt in range(2):
        for t in range(2): k(s16(SB+16*t, KB, kt, t, '0'))
        for t in range(2): k(s8(SB+16*t, KB, kt, t))
        for t in range(2): maxinto(MX+t, SB+16*t, False)
    k("v_add_u32 v10, 10240, v10"); k("v_add_u32 v11, 10240, v11")
    k("s_add_u32 s39, s39, 1"); k("s_cmp_lt_u32 s39, 16"); k(f"s_cbranch_scc1 {ll}")
    fill_negm()
    k(f"s_branch {lmain}")
```

```python
import numpy as np
from asmlib import *
from layout import *
from gen import getpc, srd

def f32hex(x): return hex(int(np.float32(x).view(np.uint32)))

def cf_tables():
    l = np.arange(64); g = l >> 4; n = l & 15; e = np.arange(8); u = e >> 2; r = e & 3
    out = []
    for t in range(4):
        for st in range(2):
            b = 32*st + 16*u[None, :] + 4*g[:, None] + r[None, :]
            d = 16*t + n[:, None]
            w = np.exp(-2j*np.pi*((b*d) % 64)/64)/8
            out += [w.real, w.imag]
    for t in range(2):
        a = 16*u[None, :] + 4*g[:, None] + r[None, :]
        c = 16*t + n[:, None]
        w = np.exp(-2j*np.pi*((a*c) % 32)/32)/np.sqrt(32)
        out += [w.real, w.imag]
    arr = np.array(out); arr[np.abs(arr) < 1e-9] = 0
    u32 = arr.astype(np.float16).reshape(-1).view(np.uint32)
    L = [".p2align 8", ".Ltabcf:"]
    for i in range(0, len(u32), 16):
        L.append(".long " + ",".join(hex(int(x)) for x in u32[i:i+16]))
    return "\n".join(L) + "\n"

CF_LDS = 36880
def colfilter(k, xin, xout, ssq, sid=2, zero_ssq2=False):
    TAB, DATA, EXC, MX = 0, 20480, 28672, 36864
    XR, XI, SS, WTr = 8, 12, 16, 24
    C1, S1, C2, S2 = 32, 40, 48, 56
    DF = 64; T1 = 96; T4 = 120; T32 = 168; AC1 = 192; AC2 = 208; PB = 224; WF = 232
    k("s_load_dwordx2 s[4:5], s[0:1], 64")
    k("v_lshrrev_b32 v4, 6, v0")
    k("v_and_b32 v5, 63, v0")
    k("v_readfirstlane_b32 s22, v4")
    k("v_lshlrev_b32 v1, 4, v5")
    k("v_bfe_u32 v2, v0, 4, 2")
    k("v_and_b32 v3, 15, v0")
    getpc(k, 26, ".Ltabcf")
    srd(k, 8, 26, 0, 20480)
    k("s_mul_i32 s23, s22, 5120")
    k("s_mov_b32 m0, s23")
    for f in range(4): k(f"buffer_load_dwordx4 v1, s[8:11], m0 offen offset:{f*1024} lds")
    k("s_add_u32 m0, s23, 4096")
    k("buffer_load_dwordx4 v1, s[8:11], m0 offen lds")
    k("s_and_b32 s24, s22, 1"); k("s_lshr_b32 s25, s22, 1")
    k("s_lshl_b32 s26, s24, 11"); k("s_lshl_b32 s27, s25, 10"); k("s_add_u32 s26, s26, s27")
    k(f"s_lshl_b32 s27, s{sid}, 13")
    k("s_add_u32 s28, s27, s26")
    k(f"s_add_u32 s29, s28, {xin}"); k(f"s_add_u32 s30, s28, {xout}")
    k(f"s_add_u32 s34, s29, 4096"); k(f"s_add_u32 s35, s30, 4096")
    k("s_lshl_b32 s31, s26, 1"); k(f"s_add_u32 s31, s31, {ssq}")
    k("s_lshl_b32 s32, s22, 11"); k("s_add_u32 s32, s32, s27"); k(f"s_add_u32 s32, s32, {WT}")
    k("v_lshlrev_b32 v6, 1, v1")
    k("s_waitcnt lgkmcnt(0)")
    srd(k, 12, 4, 0, WS_END)
    k(f"buffer_load_dwordx4 {vr(XR,4)}, v1, s[12:15], s29 offen")
    k(f"buffer_load_dwordx4 {vr(XI,4)}, v1, s[12:15], s34 offen")
    k(f"buffer_load_dwordx4 {vr(SS,4)}, v6, s[12:15], s31 offen")
    k(f"buffer_load_dwordx4 {vr(SS+4,4)}, v6, s[12:15], s31 offen offset:16")
    k(f"buffer_load_dwordx4 {vr(WTr,4)}, v6, s[12:15], s32 offen")
    k(f"buffer_load_dwordx4 {vr(WTr+4,4)}, v6, s[12:15], s32 offen offset:16")
    k("s_lshl_b32 s33, s22, 4")
    k("v_add_u32 v4, s33, v3"); k("v_cvt_f32_u32 v4, v4"); k(f"v_mul_f32 v4, {f32hex(1/2048)}, v4")
    k("v_lshlrev_b32 v5, 2, v2"); k("v_cvt_f32_u32 v7, v5")
    k(f"v_mul_f32 v{S1}, v4, v7")
    for r in range(1, 4): k(f"v_add_f32 v{S1+r}, v{S1+r-1}, v4")
    k(f"v_mul_f32 v4, {f32hex(16.0)}, v4")
    for r in range(4): k(f"v_add_f32 v{S1+4+r}, v{S1+r}, v4")
    k("v_add_u32 v5, s33, v5"); k("v_cvt_f32_u32 v5, v5")
    k("v_cvt_f32_u32 v4, v3"); k(f"v_mul_f32 v4, {f32hex(1/2048)}, v4")
    k(f"v_add_f32 v7, {f32hex(16/2048)}, v4")
    k(f"v_mul_f32 v{S2}, v4, v5"); k(f"v_mul_f32 v{S2+4}, v7, v5")
    for r in range(1, 4):
        k(f"v_add_f32 v{S2+r}, v{S2+r-1}, v4"); k(f"v_add_f32 v{S2+4+r}, v{S2+4+r-1}, v7")
    for r in range(8):
        k(f"v_cos_f32 v{C1+r}, v{S1+r}"); k(f"v_sin_f32 v{S1+r}, v{S1+r}")
    for r in range(8):
        k(f"v_cos_f32 v{C2+r}, v{S2+r}"); k(f"v_sin_f32 v{S2+r}, v{S2+r}")
    k(f"s_lshl_b32 s36, s24, 12"); k("s_lshl_b32 s37, s25, 11"); k("s_add_u32 s36, s36, s37")
    k("v_add_u32 v4, s36, v1")
    k(f"v_mov_b32 v7, {f32hex(1e-5)}")
    k("s_waitcnt vmcnt(2)")
    for e in range(8): k(f"v_fmamk_f32 v{SS+e}, v{SS+e}, {f32hex(1/640)}, v7")
    for e in range(8): k(f"v_rsq_f32 v{SS+e}, v{SS+e}")
    for ri, X in ((0, XR), (1, XI)):
        for q in range(4):
            k(f"v_lshlrev_b32 v{WF+2*q}, 16, v{X+q}"); k(f"v_and_b32 v{WF+2*q+1}, 0xffff0000, v{X+q}")
        for q in range(4):
            k(f"v_fma_mixlo_f16 v{PB+4*ri+q}, v{WF+2*q}, v{SS+2*q}, 0")
        for q in range(4):
            k(f"v_fma_mixhi_f16 v{PB+4*ri+q}, v{WF+2*q+1}, v{SS+2*q+1}, 0")
        k(f"ds_write_b128 v4, {vr(PB+4*ri,4)} offset:{DATA+ri*1024}")
    k("s_waitcnt vmcnt(0)")
    for e in range(8):
        k(f"v_lshlrev_b32 v{WF+2*e}, 16, v{WTr+e}"); k(f"v_and_b32 v{WF+2*e+1}, 0xffff0000, v{WTr+e}")
    k(f"v_max_f32 v5, |v{WF}|, |v{WF+1}|")
    for e in range(1, 8): k(f"v_max3_f32 v5, |v{WF+2*e}|, |v{WF+2*e+1}|, v5")
    for sh in (8, 4, 2, 1): k(f"v_max_f32_dpp v5, v5, v5 row_ror:{sh} row_mask:0xf bank_mask:0xf")
    k("s_lshl_b32 s37, s22, 4"); k("v_lshl_add_u32 v7, v2, 2, s37")
    k(f"ds_write_b32 v7, v5 offset:{EXC}")
    k("s_lshl_b32 s37, s22, 12"); k("v_add_u32 v5, s37, v1")
    k("s_lshl_b32 s37, s25, 13"); k("v_add_u32 v7, s37, v1")
    k("v_mov_b32 v6, 0")
    k("s_waitcnt lgkmcnt(0)"); k("s_barrier")
    for st in range(2):
        for ri in range(2): k(f"ds_read_b128 {vr(T1+12*st+4*ri,4)}, v5 offset:{TAB+st*2048+ri*1024}")
    for ta in range(2):
        for st in range(2):
            for ri in range(2): k(f"ds_read_b128 {vr(DF+16*ta+8*st+4*ri,4)}, v1 offset:{DATA+(ta*2+st)*2048+ri*1024}")
    for q in range(4): k(f"ds_read_b128 {vr(AC2+4*q,4)}, v6 offset:{EXC+16*q}")
    for t in range(2):
        for ri in range(2): k(f"ds_read_b128 {vr(T32+12*t+4*ri,4)}, v1 offset:{TAB+16384+t*2048+ri*1024}")
    k("s_waitcnt lgkmcnt(12)")
    for st in range(2):
        for q in range(4): k(f"v_xor_b32 v{T1+12*st+8+q}, 0x80008000, v{T1+12*st+4+q}")
    def mf(d, a, b, first): k(f"v_mfma_f32_16x16x32_f16 {vr(d,4)}, {vr(a,4)}, {vr(b,4)}, {'0' if first else vr(d,4)}")
    for ta in range(2):
        if ta == 1: k("s_waitcnt lgkmcnt(8)")
        for st in range(2):
            xr = DF+16*ta+8*st; xi = xr+4; wr = T1+12*st; wi = wr+4; wn = wr+8
            mf(AC1+8*ta, xr, wr, st == 0); mf(AC1+8*ta+4, xr, wi, st == 0)
            mf(AC1+8*ta, xi, wn, False); mf(AC1+8*ta+4, xi, wr, False)
    k("s_waitcnt lgkmcnt(4)")
    k(f"v_max3_f32 v4, v{AC2}, v{AC2+1}, v{AC2+2}")
    for q in range(3, 15, 2): k(f"v_max3_f32 v4, v{AC2+q}, v{AC2+q+1}, v4")
    k(f"v_max_f32 v4, v{AC2+15}, v4")
    k("v_frexp_exp_i32_f32 v4, v4")
    k("v_max_i32 v4, -100, v4"); k("v_min_i32 v4, 100, v4")
    k("v_ldexp_f32 v6, 1.0, v4")
    k("v_sub_u32 v4, 0, v4"); k("v_ldexp_f32 v4, 1.0, v4")
    for e in range(8): k(f"v_pk_mul_f32 {vr(WF+2*e,2)}, {vr(WF+2*e,2)}, v[4:5] op_sel_hi:[1,0]")
    for t in range(2):
        for st in range(2):
            for ri in range(2): k(f"ds_read_b128 {vr(T4+24*t+12*st+4*ri,4)}, v7 offset:{TAB+t*4096+st*2048+ri*1024}")
    k("s_waitcnt lgkmcnt(8)")
    for t in range(2):
        for q in range(4): k(f"v_xor_b32 v{T32+12*t+8+q}, 0x80008000, v{T32+12*t+4+q}")
    def cmul(dr, di, e, xr, xi, c, s, conj, t0, t1):
        m = 'lo' if e % 2 == 0 else 'hi'
        k(f"v_mul_f32 v{t0}, v{xr}, v{c}"); k(f"v_mul_f32 v{t1}, v{xi}, v{c}")
        k(f"v_fma_mix{m}_f16 v{dr+e//2}, {'' if conj else '-'}v{xi}, v{s}, v{t0}")
        k(f"v_fma_mix{m}_f16 v{di+e//2}, {'-' if conj else ''}v{xr}, v{s}, v{t1}")
    TT = SS
    for e in range(8):
        ta, r = e >> 2, e & 3
        cmul(PB, PB+4, e, AC1+8*ta+r, AC1+8*ta+4+r, C1+e, S1+e, True, TT+2*(e % 4), TT+2*(e % 4)+1)
    for u in range(2):
        wr = T32+12*u; wi = wr+4; wn = wr+8
        mf(AC2+8*u, wr, PB, True); mf(AC2+8*u+4, wi, PB, True)
        mf(AC2+8*u, wn, PB+4, False); mf(AC2+8*u+4, wr, PB+4, False)
    k("s_waitcnt lgkmcnt(0)")
    for t in range(2):
        for st in range(2):
            for q in range(4): k(f"v_xor_b32 v{T4+24*t+12*st+8+q}, 0x80008000, v{T4+24*t+12*st+4+q}")
    PB2 = DF+16
    for e in range(8):
        u, r = e >> 2, e & 3
        cmul(PB2, PB2+4, e, AC2+8*u+r, AC2+8*u+4+r, WF+2*e, WF+2*e+1, False, TT+2*(e % 4), TT+2*(e % 4)+1)
    for ta in range(2):
        wr = T32+12*ta; wi = wr+4; wn = wr+8
        mf(AC1+8*ta, PB2, wr, True); mf(AC1+8*ta+4, PB2, wn, True)
        mf(AC1+8*ta, PB2+4, wi, False); mf(AC1+8*ta+4, PB2+4, wr, False)
    k("s_lshl_b32 s36, s25, 10"); k("s_lshl_b32 s37, s24, 3"); k("s_add_u32 s36, s36, s37")
    k("v_add_u32 v4, s36, v1")
    k("s_lshl_b32 s36, s24, 12"); k("v_add_u32 v5, s36, v1")
    k("s_barrier")
    for e in range(8):
        ta, r = e >> 2, e & 3
        cmul(PB+2*ta, PB+4+2*ta, r, AC1+8*ta+r, AC1+8*ta+4+r, C2+e, S2+e, False, TT+2*(e % 4), TT+2*(e % 4)+1)
        if r == 3:
            k(f"ds_write_b64 v4, {vr(PB+2*ta,2)} offset:{EXC+ta*4096}")
            k(f"ds_write_b64 v4, {vr(PB+4+2*ta,2)} offset:{EXC+ta*4096+2048}")
    for ri, X in ((0, XR), (1, XI)):
        for q in range(4):
            k(f"v_lshlrev_b32 v{WF+8*ri+2*q}, 16, v{X+q}"); k(f"v_and_b32 v{WF+8*ri+2*q+1}, 0xffff0000, v{X+q}")
    k(f"s_cmp_eq_u32 s{sid}, 0"); k("s_cselect_b32 s36, 0, 1.0"); k("v_mul_f32 v7, s36, v6")
    k("s_waitcnt lgkmcnt(0)"); k("s_barrier")
    for st in range(2):
        for ri in range(2): k(f"ds_read_b128 {vr(DF+8*st+4*ri,4)}, v5 offset:{EXC+ri*2048+st*1024}")
    for st in range(2):
        k(f"s_waitcnt lgkmcnt({2-2*st})")
        sr_, si = DF+8*st, DF+8*st+4
        for u in range(2):
            wr = T4+24*u+12*st; wi = wr+4; wn = wr+8
            mf(AC2+8*u, wr, sr_, st == 0); mf(AC2+8*u+4, wr, si, st == 0)
            mf(AC2+8*u, wi, si, False); mf(AC2+8*u+4, wn, sr_, False)
    for ri in range(2):
        for e in range(8):
            u, r = e >> 2, e & 3
            k(f"v_fmac_f32 v{WF+8*ri+e}, v{AC2+8*u+4*ri+r}, v{6+ri}")
        for q in range(4): k(f"v_cvt_pk_bf16_f32 v{PB+4*ri+q}, v{WF+8*ri+2*q}, v{WF+8*ri+2*q+1}")
        k(f"buffer_store_dwordx4 {vr(PB+4*ri,4)}, v1, s[12:15], s{30 if ri == 0 else 35} offen")
    if zero_ssq2:
        lz = k.lab('z')
        k(f"s_cmp_ge_u32 s{sid}, 2"); k(f"s_cbranch_scc1 {lz}")
        for q in range(4): k(f"v_mov_b32 v{8+q}, 0")
        k("v_lshlrev_b32 v4, 4, v0")
        k(f"s_lshl_b32 s36, s{sid}, 12"); k(f"s_add_u32 s36, s36, {SSQ2}")
        k("buffer_store_dwordx4 v[8:11], v4, s[12:15], s36 offen")
        k(f"{lz}:")
    k("s_endpgm")

def wtpack(k, sid=2):
    k("s_load_dwordx4 s[4:7], s[0:1], 8")
    k("s_load_dwordx2 s[20:21], s[0:1], 64")
    k("v_lshrrev_b32 v1, 6, v0"); k("v_and_b32 v2, 63, v0")
    k("v_readfirstlane_b32 s22, v1")
    k(f"s_lshr_b32 s23, s{sid}, 4")
    k(f"s_bfe_u32 s24, s{sid}, 0x20002")
    k(f"s_and_b32 s25, s{sid}, 3")
    k("s_lshl_b32 s26, s23, 6"); k("v_add_u32 v3, s26, v2")
    k("v_cmp_eq_u32 vcc, 0, v3"); k("v_mov_b32 v5, 320"); k("v_cndmask_b32 v4, v3, v5, vcc"); k("v_lshlrev_b32 v4, 1, v4")
    k("v_lshlrev_b32 v3, 13, v3")
    k("s_lshl_b32 s26, s25, 8"); k("s_lshl_b32 s27, s24, 4"); k("s_add_u32 s26, s26, s27"); k("s_lshl_b32 s27, s22, 2"); k("s_add_u32 s26, s26, s27")
    k("s_mul_i32 s26, s26, 642")
    k("s_lshl_b32 s28, s24, 11"); k("s_lshl_b32 s27, s25, 9"); k("s_add_u32 s28, s28, s27"); k("s_lshl_b32 s27, s22, 7"); k("s_add_u32 s28, s28, s27")
    k(f"s_add_u32 s28, s28, {WT}")
    k("s_waitcnt lgkmcnt(0)")
    srd(k, 8, 4, 0, 2048*642); srd(k, 12, 6, 0, 2048*642); srd(k, 16, 20, 0, WS_END)
    for e in range(8):
        u, r = e >> 2, e & 3
        k(f"s_add_u32 s29, s26, {642*64*(16*u+r)}")
        for dl in range(4):
            k(f"buffer_load_ushort v{8+8*dl+e}, v4, s[8:11], s29 offen offset:{642*dl}")
            k(f"buffer_load_ushort v{40+8*dl+e}, v4, s[12:15], s29 offen offset:{642*dl}")
    for e in range(8):
        k(f"s_waitcnt vmcnt({56-8*e})")
        for dl in range(4): k(f"v_lshl_or_b32 v{8+8*dl+e}, v{40+8*dl+e}, 16, v{8+8*dl+e}")
    for q in range(8): k(f"buffer_store_dwordx4 {vr(8+4*q,4)}, v3, s[16:19], s28 offen offset:{16*q}")
    k("s_endpgm")
```

```python
import numpy as np
from asmlib import *
from layout import *
from gen import getpc, srd, n1_of_p
def f32hex(x): return hex(int(np.float32(x).view(np.uint32)))

class VM:
    def __init__(self): self.tags = []
    def issue(self, tag): self.tags.append(tag)
    def wait(self, pred):
        last = -1
        for i, t in enumerate(self.tags):
            if pred(t): last = i
        return len(self.tags) - 1 - last

EA_R = 5
EA_LDS = EA_R*20480
def engineA2(k, mode, sid=2, PD=3):
    R = EA_R
    fin = mode == 'fin'
    NC = 10 if fin else 5
    aoff = {'p0': 0, 'p4': 64, 'wop': 40, 'fin': 48}[mode]
    k(f"s_load_dwordx2 s[4:5], s[0:1], {aoff}")
    k(f"s_load_dwordx2 s[6:7], s[0:1], 64")
    if mode == 'wop':
        k(f"s_lshr_b32 s20, s{sid}, 3"); k(f"s_and_b32 s21, s{sid}, 7")
    else:
        k(f"s_and_b32 s24, s{sid}, 7"); k(f"s_lshr_b32 s25, s{sid}, 3")
        k("s_lshr_b32 s20, s24, 1"); k("s_lshl_b32 s20, s20, 3"); k("s_lshr_b32 s26, s25, 2"); k("s_add_u32 s20, s20, s26")
        k("s_and_b32 s21, s24, 1"); k("s_lshl_b32 s21, s21, 2"); k("s_and_b32 s26, s25, 3"); k("s_add_u32 s21, s21, s26")
    k("v_lshrrev_b32 v1, 6, v0"); k("v_and_b32 v2, 63, v0")
    k("v_readfirstlane_b32 s22, v1")
    k("v_and_b32 v3, 15, v0"); k("v_bfe_u32 v4, v0, 4, 2"); k("v_lshlrev_b32 v5, 4, v2")
    k("s_mul_i32 s24, s21, 102400"); k("s_mul_i32 s23, s22, 5120")
    NA = PD+1
    VA = 16; VB = VA+16*NA; VD = VB+40; VG = VD+20; VS = VG+4; VONE = VS+4; VRES = VONE+4
    vm = VM()
    def dma(c):
        sw = "s[8:11]" if c < 5 else "s[32:35]"
        cc = c % 5; assert R == 5
        L = [[f"s_add_u32 m0, s23, {cc*20480}", f"buffer_load_dwordx4 v5, {sw}, m0 offen lds"]]
        for f in range(1, 4): L.append([f"buffer_load_dwordx4 v5, {sw}, m0 offen offset:{f*1024} lds"])
        L.append([f"s_add_u32 m0, s23, {cc*20480+4096}", f"buffer_load_dwordx4 v5, {sw}, m0 offen lds"])
        return [(c, l) for l in L]
    def aload(c):
        L = []
        for s in range(4*c, 4*c+4):
            d = vr(VA+16*(c % NA)+4*(s % 4), 4)
            if mode in ('p4', 'fin'):
                base = (AFX if s < 20 else AFO) if fin else AFO
                pre = [f"s_mov_b32 s27, {base + (s % 20)*2048}"] if s % 2 == 0 else []
                L.append(pre + [f"buffer_load_dwordx4 {d}, v7, s[12:15], s27 offen offset:{(s % 2)*2048}"])
            else:
                L.append([f"buffer_load_dwordx4 {d}, v7, s[12:15], 0 offen offset:{s*64}"])
        return [(c, l) for l in L]
    def emit(e):
        for x in e[1]: k(x)
        vm.issue(e[0])
    static_b = mode != 'p4'
    if static_b:
        getpc(k, 26, ".Ltab3" if fin else ".Ltab1")
        srd(k, 8, 26, "s24", 102400)
        for c in range(PD):
            for e in dma(c): emit(e)
    k("s_lshl_b32 s25, s20, 6"); k("s_lshl_b32 s26, s22, 4"); k("s_add_u32 s25, s25, s26")
    k("v_add_u32 v6, s25, v3")
    if mode == 'p0':
        n1_of_p(k, 7, 6, 8, 9)
        k("v_mul_u32_u24 v7, 1280, v7"); k("v_lshl_add_u32 v7, v4, 4, v7")
    elif mode in ('p4', 'fin'):
        k("v_lshrrev_b32 v7, 5, v6"); k("v_mul_u32_u24 v7, 40960, v7"); k("v_lshl_add_u32 v7, v4, 9, v7")
        k("v_and_b32 v8, 31, v6"); k("v_lshl_add_u32 v7, v8, 4, v7")
    else:
        k("v_lshrrev_b32 v8, 4, v6"); k("v_mul_u32_u24 v8, 20, v8")
        k("v_and_b32 v9, 3, v6"); k("v_add_u32 v8, v8, v9")
        k("v_bfe_u32 v10, v6, 3, 1"); k("v_lshl_add_u32 v8, v10, 2, v8")
        k("v_bfe_u32 v10, v6, 2, 1"); k("v_lshl_add_u32 v8, v10, 3, v8")
        k("v_subrev_u32 v10, 512, v6"); k("v_lshrrev_b32 v10, 2, v10")
        k("v_mul_u32_u24 v10, 20, v10"); k("v_add3_u32 v10, v10, v9, 16")
        k("v_cmp_gt_u32 vcc, 512, v6"); k("v_cndmask_b32 v7, v10, v8, vcc")
        k("v_mul_u32_u24 v7, 1280, v7"); k("v_lshl_add_u32 v7, v4, 4, v7")
    if mode in ('p0', 'wop'):
        for r in range(4): k(f"v_mov_b32 v{VONE+r}, 0x3f803f80")
    if fin:
        n1_of_p(k, 10, 6, 8, 9)
        k("v_mul_u32_u24 v10, 1280, v10"); k("v_lshl_add_u32 v12, v4, 3, v10"); k("v_lshl_add_u32 v10, v4, 4, v10")
        k("v_lshlrev_b32 v13, 2, v6")
    else:
        k("v_lshlrev_b32 v10, 12, v3"); k("v_lshl_add_u32 v10, v4, 3, v10")
    k("v_add_u32 v11, 0x10000, v5")
    k("s_waitcnt lgkmcnt(0)")
    if mode in ('p4', 'fin'):
        srd(k, 12, 6, 0, WS_END)
        k(f"s_add_u32 s24, s24, {WOT if fin else WOP}")
        srd(k, 32 if fin else 8, 6, "s24", 102400)
    else:
        srd(k, 12, 4, 0, 2048*1280 if mode == 'p0' else 640*1280)
    for c in range(PD):
        if not static_b:
            for e in dma(c): emit(e)
        for e in aload(c): emit(e)
    k("s_mul_i32 s28, s21, 80*4096"); k("s_lshl_b32 s29, s25, 1"); k("s_add_u32 s28, s28, s29")
    extra = []
    if mode == 'p4':
        for jl in range(5):
            extra.append((99, [f"s_add_u32 s29, s28, {XB+jl*65536}", f"buffer_load_dwordx2 {vr(VRES+2*jl,2)}, v10, s[12:15], s29 offen"]))
    if fin:
        extra.append((99, [f"s_mov_b32 s29, {DC0}", f"buffer_load_dword v{VRES}, v13, s[12:15], s29 offen"]))
        extra.append((99, [f"s_mov_b32 s29, {DCD}", f"buffer_load_dword v{VRES+1}, v13, s[12:15], s29 offen"]))
    def breads(s):
        for jl in range(5):
            o = (s % 20)*5120+jl*1024
            k(f"ds_read_b128 {vr(VB+20*(s % 2)+4*jl,4)}, v{5 if o < 65536 else 11} offset:{o % 65536}")
    def nextloads(c):
        if c < NC: return dma(c) + aload(c)
        if c == NC: return extra
        return []
    k(f"s_waitcnt vmcnt({vm.wait(lambda t: t == 0)})"); k("s_barrier")
    breads(0)
    pend = nextloads(PD)
    NS = 4*NC
    for s in range(NS):
        c, st = s // 4, s % 4
        if s+1 < NS:
            if st == 3:
                for e in pend: emit(e)
                k(f"s_waitcnt vmcnt({vm.wait(lambda t: t == c+1)}) lgkmcnt(0)"); k("s_barrier")
                pend = nextloads(c+1+PD)
                breads(s+1)
            else:
                breads(s+1); k("s_waitcnt lgkmcnt(5)")
        else:
            k("s_waitcnt lgkmcnt(0)")
        a = vr(VA+16*(c % NA)+4*st, 4)
        for jl in range(5):
            b = vr(VB+20*(s % 2)+4*jl, 4)
            x, y = (b, a) if fin else (a, b)
            k(f"v_mfma_f32_16x16x32_bf16 {vr(VD+4*jl,4)}, {x}, {y}, {'0' if s == 0 else vr(VD+4*jl,4)}")
            if pend and jl in (1, 3, 4) and not (st == 3 and len(pend) <= 4): emit(pend.pop(0))
        if mode == 'p0': k(f"v_mfma_f32_16x16x32_bf16 {vr(VG,4)}, {a}, {a}, {'0' if s == 0 else vr(VG,4)}")
        if mode in ('p0', 'wop'): k(f"v_mfma_f32_16x16x32_bf16 {vr(VS,4)}, {a}, {vr(VONE,4)}, {'0' if s == 0 else vr(VS,4)}")
    for e in pend: emit(e)
    T = VA
    lend = k.lab('end')
    if fin:
        srd(k, 16, 4, 0, 2048*1280)
        k("s_mul_i32 s28, s21, 160")
        k("s_waitcnt vmcnt(0)")
        k(f"v_add_f32 v{VRES}, v{VRES}, v{VRES+1}")
        for r in range(20): k(f"v_add_f32 v{VD+r}, v{VD+r}, v{VRES}")
        for q in range(10): k(f"v_cvt_pk_bf16_f32 v{T+q}, v{VD+2*q}, v{VD+2*q+1}")
        k(f"buffer_store_dwordx4 {vr(T,4)}, v10, s[16:19], s28 offen")
        k(f"buffer_store_dwordx4 {vr(T+4,4)}, v10, s[16:19], s28 offen offset:64")
        k(f"buffer_store_dwordx2 {vr(T+8,2)}, v12, s[16:19], s28 offen offset:128")
    elif mode == 'p0':
        srd(k, 16, 6, XA, 0x280000)
        for jl in range(5):
            k(f"v_cvt_pk_bf16_f32 v{T+2*jl}, v{VD+4*jl}, v{VD+4*jl+1}")
            k(f"v_cvt_pk_bf16_f32 v{T+2*jl+1}, v{VD+4*jl+2}, v{VD+4*jl+3}")
            k(f"s_add_u32 s29, s28, {jl*65536}")
            k(f"buffer_store_dwordx2 {vr(T+2*jl,2)}, v10, s[16:19], s29 offen")
        k("s_cmp_lg_u32 s21, 0"); k(f"s_cbranch_scc1 {lend}")
        k("v_and_b32 v12, 3, v3")
        for r in range(1, 4):
            k(f"v_cmp_eq_u32 vcc, {r}, v12")
            k(f"v_cndmask_b32 v{VG}, v{VG}, v{VG+r}, vcc")
            k(f"v_cndmask_b32 v{VS}, v{VS}, v{VS+r}, vcc")
        k(f"v_mul_f32 v13, {f32hex(1/640)}, v{VS}")
        k(f"v_fma_f32 v14, -v13, v{VS}, v{VG}")
        k("v_max_f32 v14, 0, v14")
        k("v_lshrrev_b32 v12, 2, v3")
        k("v_cmp_eq_u32 vcc, v12, v4")
        k("v_lshlrev_b32 v15, 2, v6")
        srd(k, 16, 6, SSQ0, 0x8000)
        k("s_mov_b64 exec, vcc")
        k("buffer_store_dword v14, v15, s[16:19], 0 offen")
        k(f"s_movk_i32 s29, {DC0-SSQ0}")
        k("buffer_store_dword v13, v15, s[16:19], s29 offen")
    elif mode == 'wop':
        k("s_lshr_b32 s29, s25, 5"); k("s_mul_i32 s29, s29, 5120"); k("s_add_u32 s29, s29, s24")
        k("s_and_b32 s30, s22, 1"); k("s_lshl_b32 s30, s30, 9"); k("s_add_u32 s29, s29, s30")
        k("v_lshrrev_b32 v12, 1, v4"); k("v_lshlrev_b32 v12, 8, v12"); k("v_lshl_add_u32 v12, v3, 4, v12")
        k("v_and_b32 v13, 1, v4"); k("v_lshl_add_u32 v12, v13, 3, v12")
        srd(k, 16, 6, WOP, 819200)
        k("s_cmp_eq_u32 s21, 0"); k("s_cselect_b32 s30, 1, 99")
        k("v_cmp_eq_u32 vcc, s30, v3")
        for r in range(4):
            k(f"v_mul_f32 v{VS+r}, {f32hex(1/640)}, v{VS+r}")
            k(f"v_cndmask_b32 v{VD+r}, v{VD+r}, v{VS+r}, vcc")
        for jl in range(5):
            k(f"v_cvt_pk_bf16_f32 v{T+2*jl}, v{VD+4*jl}, v{VD+4*jl+1}")
            k(f"v_cvt_pk_bf16_f32 v{T+2*jl+1}, v{VD+4*jl+2}, v{VD+4*jl+3}")
            if jl == 4: k("s_add_u32 s29, s29, 4096")
            k(f"buffer_store_dwordx2 {vr(T+2*jl,2)}, v12, s[16:19], s29 offen offset:{(jl % 4)*1024}")
    else:
        k("s_waitcnt vmcnt(0)")
        k("s_cmp_eq_u32 s21, 0"); k("s_cselect_b32 s30, 1, 99")
        k("v_cmp_eq_u32 vcc, s30, v3")
        k("v_lshlrev_b32 v15, 4, v4"); k("s_lshl_b32 s31, s25, 2"); k(f"s_add_u32 s31, s31, {DCD}")
        lsk = k.lab('sk')
        k("s_cmp_lg_u32 s21, 0"); k(f"s_cbranch_scc1 {lsk}")
        k("s_mov_b64 exec, vcc")
        k(f"buffer_store_dwordx4 {vr(VD,4)}, v15, s[12:15], s31 offen")
        k("s_mov_b64 exec, -1")
        k(f"{lsk}:")
        for r in range(4): k(f"v_cndmask_b32 v{VD+r}, v{VD+r}, 0, vcc")
        for jl in range(5):
            for h in range(2):
                k(f"v_lshlrev_b32 v{T}, 16, v{VRES+2*jl+h}"); k(f"v_and_b32 v{T+1}, 0xffff0000, v{VRES+2*jl+h}")
                k(f"v_add_f32 v{VD+4*jl+2*h}, v{VD+4*jl+2*h}, v{T}"); k(f"v_add_f32 v{VD+4*jl+2*h+1}, v{VD+4*jl+2*h+1}, v{T+1}")
            k(f"v_cvt_pk_bf16_f32 v{T+4+2*jl}, v{VD+4*jl}, v{VD+4*jl+1}")
            k(f"v_cvt_pk_bf16_f32 v{T+4+2*jl+1}, v{VD+4*jl+2}, v{VD+4*jl+3}")
            k(f"s_add_u32 s29, s28, {XA+jl*65536}")
            k(f"buffer_store_dwordx2 {vr(T+4+2*jl,2)}, v10, s[12:15], s29 offen")
        for r in range(4): k(f"v_mul_f32 v{VG+r}, v{VD+r}, v{VD+r}")
        for jl in range(1, 5):
            for r in range(4): k(f"v_fmac_f32 v{VG+r}, v{VD+4*jl+r}, v{VD+4*jl+r}")
        for sh in (8, 4, 2, 1):
            for r in range(4): k(f"v_add_f32_dpp v{VG+r}, v{VG+r}, v{VG+r} row_ror:{sh} row_mask:0xf bank_mask:0xf")
        for r in range(1, 4):
            k(f"v_cmp_eq_u32 vcc, {r}, v3")
            k(f"v_cndmask_b32 v{VG}, v{VG}, v{VG+r}, vcc")
        k("v_cmp_gt_u32 vcc, 4, v3")
        k("v_lshl_add_u32 v15, v3, 2, v15")
        k("s_lshl_b32 s31, s25, 2"); k(f"s_add_u32 s31, s31, {SSQ2}")
        k("s_mov_b64 exec, vcc")
        k(f"buffer_atomic_add_f32 v{VG}, v15, s[12:15], s31 offen")
    k(f"{lend}:")
    k("s_endpgm")

def wotpack(k, sid=2):
    k("s_load_dwordx2 s[4:5], s[0:1], 40")
    k("s_load_dwordx2 s[6:7], s[0:1], 64")
    k("v_lshrrev_b32 v1, 6, v0"); k("v_and_b32 v2, 63, v0")
    k("v_readfirstlane_b32 s22, v1")
    k(f"s_lshl_b32 s20, s{sid}, 2"); k("s_add_u32 s20, s20, s22")
    k("s_mul_i32 s21, s20, 3277"); k("s_lshr_b32 s21, s21, 16")
    k("s_mul_i32 s23, s21, 20"); k("s_sub_u32 s23, s20, s23")
    k("s_mul_i32 s24, s23, 40"); k("s_mul_i32 s25, s23, 160"); k(f"s_sub_u32 s25, s25, {160*16-16}")
    k("s_cmp_lt_u32 s23, 16")
    k("s_cselect_b32 s24, s24, s25"); k("s_cselect_b32 s26, 20, 80"); k("s_cselect_b32 s27, 4, 40"); k("s_cselect_b32 s28, 8, 20")
    k("s_mul_i32 s24, s24, 1280"); k("s_mul_i32 s25, s21, 160"); k("s_add_u32 s24, s24, s25"); k("s_mul_i32 s28, s28, 1280")
    k("v_and_b32 v3, 15, v2"); k("v_lshrrev_b32 v4, 5, v2"); k("v_bfe_u32 v5, v2, 4, 1")
    k("v_mul_lo_u32 v4, v4, s26"); k("v_mul_lo_u32 v5, v5, s27"); k("v_add_u32 v4, v4, v5"); k("v_mul_u32_u24 v4, 1280, v4")
    k("v_lshl_add_u32 v6, v3, 1, v4")
    k("v_lshrrev_b32 v5, 2, v3"); k("v_lshl_add_u32 v4, v5, 4, v4"); k("v_and_b32 v5, 3, v3"); k("v_lshl_add_u32 v4, v5, 1, v4")
    k("v_lshlrev_b32 v7, 4, v2")
    k("s_mul_i32 s30, s20, 5120"); k(f"s_add_u32 s30, s30, {WOT}")
    k("s_waitcnt lgkmcnt(0)")
    srd(k, 8, 4, 0, 640*1280); srd(k, 12, 6, 0, WS_END)
    for e in range(8):
        if e == 4: k("s_add_u32 s24, s24, s28")
        k(f"s_add_u32 s29, s24, {(e & 3)*1280}")
        for jl in range(5):
            off = 128 if jl == 4 else 64*(jl >> 1) + 8*(jl & 1)
            k(f"buffer_load_ushort v{8+8*jl+e}, v{6 if jl == 4 else 4}, s[8:11], s29 offen offset:{off}")
    for q in range(4):
        k(f"s_waitcnt vmcnt({30-10*q})")
        for jl in range(5): k(f"v_lshl_or_b32 v{48+4*jl+q}, v{8+8*jl+2*q+1}, 16, v{8+8*jl+2*q}")
    for jl in range(5):
        if jl == 4: k("s_add_u32 s30, s30, 4096")
        k(f"buffer_store_dwordx4 {vr(48+4*jl,4)}, v7, s[12:15], s30 offen offset:{(jl % 4)*1024}")
    k("s_endpgm")
```

```python
import numpy as np
from asmlib import *
from layout import *
from gen import getpc, srd
def f32hex(x): return hex(int(np.float32(x).view(np.uint32)))
EB_R, EB_PD = 5, 4
EB_LDS = EB_R*16384 + 512
CS = Dh**-0.5 * np.log2(np.e)

def div20(k, vq, vr_, vx):
    k(f"v_mul_u32_u24 v{vq}, 3277, v{vx}"); k(f"v_lshrrev_b32 v{vq}, 16, v{vq}")
    k(f"v_mul_u32_u24 v{vr_}, 20, v{vq}"); k(f"v_sub_u32 v{vr_}, v{vx}, v{vr_}")

def engineB(k, mode, sid=2, afx=False, xin=XB):
    R, PD = EB_R, EB_PD
    RS = R*16384
    gp = mode == 'gp'
    stride = 3840 if gp else 4096
    VDMA = 8
    VTR = 12
    VW = 20
    VSS = 24
    FR = 32
    AC = 64
    WR = 128
    k("s_load_dwordx2 s[4:5], s[0:1], 64")
    if gp: k("s_load_dwordx2 s[6:7], s[0:1], 32")
    k("v_lshrrev_b32 v1, 6, v0"); k("v_and_b32 v2, 63, v0")
    k("v_readfirstlane_b32 s22, v1")
    if gp:
        k(f"s_mul_i32 s21, s{sid}, 4370"); k("s_lshr_b32 s21, s21, 16"); k("s_mul_i32 s20, s21, 15"); k(f"s_sub_u32 s20, s{sid}, s20")
    else:
        k(f"s_and_b32 s20, s{sid}, 7"); k("s_lshl_b32 s20, s20, 1"); k(f"s_bfe_u32 s21, s{sid}, 0x10003"); k("s_add_u32 s20, s20, s21")
        k(f"s_lshr_b32 s21, s{sid}, 4")
    k("s_lshl_b32 s23, s21, 2"); k("s_add_u32 s23, s23, s22")
    k("v_lshlrev_b32 v3, 4, v2")
    k("v_lshrrev_b32 v4, 4, v2")
    k("v_and_b32 v5, 15, v2")
    k("v_lshlrev_b32 v6, 2, v4"); k("v_xor_b32 v6, v6, v5"); k("v_lshlrev_b32 v6, 4, v6")
    k(f"v_mul_u32_u24 v7, {stride}, v4"); k(f"v_add_u32 v{VDMA}, v6, v7")
    for q in range(1, 4): k(f"v_add_u32 v{VDMA+q}, {4*stride-1024}, v{VDMA+q-1}")
    k("v_lshrrev_b32 v6, 2, v5")
    k("v_lshrrev_b32 v7, 5, v2")
    k(f"v_lshl_add_u32 v1, v7, {3 if gp else 2}, v6"); k("v_lshlrev_b32 v1, 8, v1")
    k("v_and_b32 v21, 3, v5"); k("v_lshl_add_u32 v1, v21, 3, v1")
    k("v_and_b32 v21, 1, v4"); k("v_lshl_add_u32 v1, v21, 5, v1")
    for t in range(4):
        k(f"s_add_u32 s24, s22, {t}"); k("s_and_b32 s24, s24, 3"); k(f"s_mov_b32 s{40+t}, s24")
        k(f"v_xor_b32 v21, s24, v6"); k(f"v_lshl_add_u32 v{VTR+t}, v21, 6, v1")
        k(f"v_add_u32 v{VTR+4+t}, 0x10000, v{VTR+t}")
    second = 1024 if gp else 2048
    if gp:
        k("v_and_b32 v21, 31, v2"); k("s_lshl_b32 s24, s23, 5"); k("v_add_u32 v21, s24, v21")
        k("v_lshrrev_b32 v21, 4, v21")
        k("v_mul_u32_u24 v22, 205, v21"); k("v_lshrrev_b32 v22, 10, v22")
        k("v_mul_u32_u24 v23, 5, v22"); k("v_sub_u32 v23, v21, v23")
        k(f"v_mul_u32_u24 v{VW}, 102400, v22"); k(f"v_lshl_add_u32 v{VW}, v23, 10, v{VW}")
        k(f"v_lshl_add_u32 v{VW}, v7, 8, v{VW}"); k(f"v_lshl_add_u32 v{VW}, v5, 4, v{VW}")
        getpc(k, 26, ".Ltab1")
        srd(k, 12, 26, 0, 819200)
        k("s_mov_b32 s25, 0")
    else:
        k(f"v_mov_b32 v{VW}, v3")
        k("s_mul_i32 s25, s23, 40960"); k(f"s_add_u32 s25, s25, {GP}")
    for r in range(4): k(f"v_mov_b32 v{VSS+r}, 0")
    k("s_lshl_b32 s24, s20, 8"); k(f"s_mul_i32 s26, s22, {16*stride}"); k("s_add_u32 s24, s24, s26")
    if not gp: k(f"s_add_u32 s24, s24, {xin}")
    k("s_lshl_b32 s26, s22, 12")
    k("s_waitcnt lgkmcnt(0)")
    srd(k, 16, 4, 0, WS_END)
    if gp: srd(k, 8, 6, 0, 640*3840)
    SA = "s[8:11]" if gp else "s[16:19]"
    SW = "s[12:15]" if gp else "s[16:19]"
    def loads(c):
        L = []
        L.append([f"s_add_u32 m0, s26, {(c % R)*16384}", f"s_add_u32 s27, s24, {c*64*stride}",
                  f"buffer_load_dwordx4 v{VDMA}, {SA}, s27 offen lds"])
        for q in range(1, 4): L.append([f"buffer_load_dwordx4 v{VDMA+q}, {SA}, s27 offen offset:{q*1024} lds"])
        for st in range(4):
            pre = []
            if gp:
                if st % 2 == 0: pre = [f"s_mov_b32 s28, {c*10240 + (st//2)*5120}"]
                off = (st % 2)*512
            else:
                if st == 0: pre = [f"s_add_u32 s28, s25, {c*4096}"]
                off = st*1024
            L.append(pre + [f"buffer_load_dwordx4 {vr(WR+16*(c % (PD+1))+4*st,4)}, v{VW}, {SW}, s28 offen offset:{off}"])
        return L
    for c in range(PD):
        for l in loads(c):
            for x in l: k(x)
    if afx:
        for t in range(4):
            k(f"s_lshl_b32 s29, s20, 2"); k(f"s_add_u32 s29, s29, s{40+t}"); k("s_mul_i32 s29, s29, 40960")
            k("s_lshl_b32 s30, s23, 10"); k("s_add_u32 s29, s29, s30"); k(f"s_add_u32 s{48+t}, s29, {AFX}")
    def reads(s):
        c, st = s // 4, s % 4
        o = (c % R)*16384 + st*4096
        for t in range(4):
            for h in range(2):
                oo = o + h*second
                k(f"ds_read_b64_tr_b16 {vr(FR+16*(s % 2)+4*t+2*h,2)}, v{VTR+t+(4 if oo >= 65536 else 0)} offset:{oo % 65536}")
    def mainloop(swap, do_afx):
        pend = []
        k(f"s_waitcnt vmcnt({8*(PD-1)})"); k("s_barrier")
        reads(0)
        pend = loads(PD)
        for s in range(40):
            c, st = s // 4, s % 4
            if s+1 < 40:
                if st == 3:
                    for l in pend:
                        for x in l: k(x)
                    pend = []
                    nout = 8*(min(c+1+PD, 10) - (c+2))
                    k(f"s_waitcnt vmcnt({nout}) lgkmcnt(0)"); k("s_barrier")
                    if c+1+PD < 10: pend = loads(c+1+PD)
                    reads(s+1)
                else:
                    reads(s+1)
                    k("s_waitcnt lgkmcnt(8)")
            else:
                k("s_waitcnt lgkmcnt(0)")
            w = vr(WR+16*(c % (PD+1))+4*st, 4)
            for t in range(4):
                f = vr(FR+16*(s % 2)+4*t, 4)
                a, b = (f, w) if swap else (w, f)
                k(f"v_mfma_f32_32x32x16_bf16 {vr(AC+16*t,16)}, {a}, {b}, {'0' if s == 0 else vr(AC+16*t,16)}")
                if not gp: k(f"v_dot2_f32_bf16 v{VSS+t}, v{FR+16*(s % 2)+t}, v{FR+16*(s % 2)+t}, v{VSS+t}")
                if pend and t % 2 == 1 or (pend and st == 2):
                    for x in pend.pop(0): k(x)
            if do_afx:
                lk = k.lab('af')
                k(f"s_cmp_lg_u32 s23, {s}"); k(f"s_cbranch_scc1 {lk}")
                for t in range(4): k(f"buffer_store_dwordx4 {vr(FR+16*(s % 2)+4*t,4)}, v3, s[16:19], s{48+t} offen")
                k(f"{lk}:")
    def rstd_share():
        k(f"v_add_f32 v{VSS}, v{VSS}, v{VSS+1}"); k(f"v_add_f32 v{VSS+2}, v{VSS+2}, v{VSS+3}"); k(f"v_add_f32 v{VSS}, v{VSS}, v{VSS+2}")
        k(f"v_mov_b32 v{VSS+1}, v{VSS}")
        k(f"v_permlane32_swap_b32 v{VSS}, v{VSS+1}")
        k(f"v_add_f32 v{VSS}, v{VSS}, v{VSS+1}")
        k(f"v_mov_b32 v{VSS+1}, {f32hex(1e-5)}")
        k(f"v_fmamk_f32 v{VSS}, v{VSS}, {f32hex(1/640)}, v{VSS+1}")
        k(f"v_rsq_f32 v{VSS}, v{VSS}")
        k("v_and_b32 v21, 31, v2"); k("v_lshlrev_b32 v21, 2, v21")
        k("s_lshl_b32 s27, s22, 7"); k(f"s_add_u32 s27, s27, {RS}"); k("v_add_u32 v22, s27, v21")
        k(f"ds_write_b32 v22, v{VSS}")
        k("s_waitcnt lgkmcnt(0)"); k("s_barrier")
    T = FR
    if gp:
        mainloop(False, False)
        k("s_cmp_lt_u32 s20, 5"); k(f"s_cselect_b32 s30, {f32hex(CS)}, 1.0")
        k("s_cmp_lt_u32 s20, 10"); k("s_cselect_b32 s31, 1, 0")
        k("s_mul_i32 s32, s20, 205"); k("s_lshr_b32 s32, s32, 10")
        k("s_mul_i32 s33, s32, 5"); k("s_sub_u32 s33, s20, s33"); k("s_lshl_b32 s33, s33, 7")
        k("s_mul_i32 s32, s32, 20*40960"); k("s_lshl_b32 s34, s23, 11"); k("s_add_u32 s32, s32, s34"); k(f"s_add_u32 s32, s32, {GP}")
        k("v_and_b32 v1, 31, v2")
        for t in range(4):
            k(f"s_lshl_b32 s34, s{40+t}, 5"); k("s_add_u32 s34, s34, s33")
            k("v_add_u32 v8, s34, v1")
            div20(k, 9, 10, 8)
            k("v_lshrrev_b32 v11, 1, v9"); k("v_and_b32 v12, 1, v9"); k("v_lshl_add_u32 v12, v12, 4, v10")
            k("v_lshrrev_b32 v13, 3, v9"); k("v_add_u32 v13, 16, v13"); k("v_and_b32 v14, 7, v9"); k("v_lshl_add_u32 v14, v14, 2, v10"); k("v_subrev_u32 v14, 16, v14")
            k("v_cmp_gt_u32 vcc, 16, v10")
            k("v_cndmask_b32 v11, v13, v11, vcc"); k("v_cndmask_b32 v12, v14, v12, vcc")
            k("v_lshrrev_b32 v13, 5, v8")
            k("v_cmp_eq_u32 vcc, 1, s31")
            k("v_cndmask_b32 v11, v13, v11, vcc"); k("v_cndmask_b32 v12, v1, v12, vcc")
            k("v_mul_u32_u24 v11, 40960, v11"); k("v_lshl_add_u32 v11, v12, 4, v11"); k(f"v_lshl_add_u32 v{16+t}, v7, 9, v11")
        for t in range(4):
            for r in range(16): k(f"v_mul_f32 v{AC+16*t+r}, s30, v{AC+16*t+r}")
            for q in range(8): k(f"v_cvt_pk_bf16_f32 v{T+8*t+q}, v{AC+16*t+2*q}, v{AC+16*t+2*q+1}")
            k(f"buffer_store_dwordx4 {vr(T+8*t,4)}, v{16+t}, s[16:19], s32 offen")
            k(f"buffer_store_dwordx4 {vr(T+8*t+4,4)}, v{16+t}, s[16:19], s32 offen offset:1024")
        k("s_endpgm")
        return
    lv = k.lab('v')
    k("s_cmp_ge_u32 s21, 10"); k(f"s_cbranch_scc1 {lv}")
    mainloop(False, afx)
    rstd_share()
    for t in range(4):
        k(f"s_lshl_b32 s27, s{40+t}, 7"); k(f"s_add_u32 s27, s27, {RS}"); k(f"v_add_u32 v22, s27, v21")
        k(f"ds_read_b32 v{8+t}, v22")
    k("s_cmp_ge_u32 s21, 5"); k("s_cselect_b32 s30, 1, 0")
    k("s_mul_i32 s31, s30, 20"); k("s_sub_u32 s31, s23, s31")
    l4 = k.lab('four')
    k("s_cmp_ge_u32 s31, 16"); k(f"s_cbranch_scc1 {l4}")
    k("s_mov_b32 s32, 65536"); k(f"s_mov_b32 s33, {Q16}"); k("s_movk_i32 s35, 2048")
    k("s_cmp_eq_u32 s30, 1"); k("s_cselect_b32 s32, 163840, s32"); k(f"s_cselect_b32 s33, {KV}, s33"); k("s_cselect_b32 s35, 5120, s35")
    k("s_lshl_b32 s34, s31, 1"); k("s_mul_i32 s34, s34, s32"); k("s_add_u32 s33, s33, s34")
    def tile_off(t, sub):
        k(f"s_lshl_b32 s36, s20, 1"); k(f"s_lshr_b32 s37, s{40+t}, 1"); k("s_add_u32 s36, s36, s37"); k("s_mul_i32 s36, s36, s35")
        k(f"s_and_b32 s37, s{40+t}, 1"); k(f"s_mul_i32 s37, s37, {sub}"); k("s_add_u32 s36, s36, s37"); k("s_add_u32 s36, s36, s33")
    def scale_pack(t):
        k(f"s_waitcnt lgkmcnt({3-t})")
        for r in range(16): k(f"v_mul_f32 v{AC+16*t+r}, v{8+t}, v{AC+16*t+r}")
        for q in range(8): k(f"v_cvt_pk_bf16_f32 v{T+8*t+q}, v{AC+16*t+2*q}, v{AC+16*t+2*q+1}")
    for t in range(4):
        scale_pack(t)
        tile_off(t, 1024)
        k(f"buffer_store_dwordx4 {vr(T+8*t,4)}, v3, s[16:19], s36 offen")
        k("s_add_u32 s36, s36, s32")
        k(f"buffer_store_dwordx4 {vr(T+8*t+4,4)}, v3, s[16:19], s36 offen")
    k("s_endpgm")
    k(f"{l4}:")
    k("s_mov_b32 s32, 16384"); k(f"s_mov_b32 s33, {Q4}"); k("s_movk_i32 s35, 512")
    k("s_cmp_eq_u32 s30, 1"); k("s_cselect_b32 s32, 163840, s32"); k(f"s_cselect_b32 s33, {KV+2048}, s33"); k("s_cselect_b32 s35, 5120, s35")
    k("s_sub_u32 s34, s31, 16"); k("s_lshl_b32 s34, s34, 3"); k("s_mul_i32 s34, s34, s32"); k("s_add_u32 s33, s33, s34")
    k("v_mul_lo_u32 v12, v7, s32"); k("v_lshl_add_u32 v12, v21, 1, v12")
    k("s_lshl_b32 s32, s32, 1")
    for t in range(4):
        scale_pack(t)
        tile_off(t, 256)
        for j in range(4):
            k(f"buffer_store_dwordx2 {vr(T+8*t+2*j,2)}, v12, s[16:19], s36 offen")
            if j < 3: k("s_add_u32 s36, s36, s32")
    k("s_endpgm")
    k(f"{lv}:")
    mainloop(True, False)
    rstd_share()
    k("v_lshlrev_b32 v23, 4, v7")
    RV = WR
    for t in range(4):
        k(f"s_lshl_b32 s27, s{40+t}, 7"); k(f"s_add_u32 s27, s27, {RS}"); k(f"v_add_u32 v22, s27, v23")
        for j in range(4): k(f"ds_read_b128 {vr(RV+16*t+4*j,4)}, v22 offset:{32*j}")
    k("s_sub_u32 s31, s23, 40"); k("s_lshl_b32 s31, s31, 5")
    k("v_and_b32 v8, 31, v2"); k("v_add_u32 v8, s31, v8")
    div20(k, 9, 10, 8)
    k("v_mul_u32_u24 v9, 163840, v9"); k("v_mad_u32_u24 v10, v7, 20, v10"); k("v_lshl_add_u32 v12, v10, 4, v9")
    k(f"s_mov_b32 s33, {KV+2560}"); k("s_movk_i32 s35, 5120")
    for t in range(4):
        k(f"s_waitcnt lgkmcnt({12-4*t})")
        for r in range(16): k(f"v_mul_f32 v{AC+16*t+r}, v{RV+16*t+r}, v{AC+16*t+r}")
        for q in range(8): k(f"v_cvt_pk_bf16_f32 v{T+8*t+q}, v{AC+16*t+2*q}, v{AC+16*t+2*q+1}")
        tile_off(t, 1280)
        k(f"buffer_store_dwordx4 {vr(T+8*t,4)}, v12, s[16:19], s36 offen")
        k(f"buffer_store_dwordx4 {vr(T+8*t+4,4)}, v12, s[16:19], s36 offen offset:640")
    k("s_endpgm")
```

```python
import sys, numpy as np
from asmlib import *
from layout import *

NAME = "interleave_layers__spectral_gfnet__softmax_full_mha__prompt"

def tables():
    L = ['.altmacro']
    ct = np.sqrt(2/D)*np.cos(2*np.pi*np.arange(D)/D); ct[160] = 0; ct[480] = 0
    vals = list(bf16bits(ct)) + list(bf16bits(np.array([1/np.sqrt(D), -1/np.sqrt(D), 0.0])))
    for i, v in enumerate(vals): L.append(f".set .Lzq{i}, {int(v)}")
    L.append(r"""
.macro zze1 zza
.short .Lzq\zza
.endm
.macro zzf zzn, zzj
.if \zzj >= 2
zze1 %(((\zzj/2)*\zzn + (\zzj%2)*160)%640)
.elseif \zzj == 0
zze1 %(640 + (\zzn%2))
.else
zze1 642
.endif
.endm
.macro zze8 zza,zzb,zzc,zzd,zze,zzf,zzg,zzh
.short .Lzq\zza,.Lzq\zzb,.Lzq\zzc,.Lzq\zzd,.Lzq\zze,.Lzq\zzf,.Lzq\zzg,.Lzq\zzh
.endm
.macro zzg1 zzk, zzp, zzn, zzj
.if \zzj >= 2
zze8 %((\zzk*(\zzn)+\zzp)%640), %((\zzk*(\zzn+1)+\zzp)%640), %((\zzk*(\zzn+2)+\zzp)%640), %((\zzk*(\zzn+3)+\zzp)%640), %((\zzk*(\zzn+4)+\zzp)%640), %((\zzk*(\zzn+5)+\zzp)%640), %((\zzk*(\zzn+6)+\zzp)%640), %((\zzk*(\zzn+7)+\zzp)%640)
.elseif \zzj == 0
zze8 640,641,640,641,640,641,640,641
.else
zze8 642,642,642,642,642,642,642,642
.endif
.endm
.macro zzg3 zzk, zzn
.if \zzk > 0
zze8 %((\zzk*\zzn)%640), %((\zzk*\zzn+160)%640), %(((\zzk+1)*\zzn)%640), %(((\zzk+1)*\zzn+160)%640), %(((\zzk+4)*\zzn)%640), %(((\zzk+4)*\zzn+160)%640), %(((\zzk+5)*\zzn)%640), %(((\zzk+5)*\zzn+160)%640)
.else
zze8 %(640+(\zzn%2)), 642, %(((\zzk+1)*\zzn)%640), %(((\zzk+1)*\zzn+160)%640), %(((\zzk+4)*\zzn)%640), %(((\zzk+4)*\zzn+160)%640), %(((\zzk+5)*\zzn)%640), %(((\zzk+5)*\zzn+160)%640)
.endif
.endm
.p2align 8
.Ltab1:
.set .Lq, 0
.rept 51200
zzg1 %((80*(.Lq/6400) + 16*((.Lq/64)%5) + .Lq%16)/2), %((.Lq%2)*160), %(32*((.Lq/320)%20) + 8*((.Lq/16)%4)), %(80*(.Lq/6400) + 16*((.Lq/64)%5) + .Lq%16)
.set .Lq, .Lq+1
.endr
.p2align 8
.Ltab3:
.set .Lq, 0
.rept 51200
zzg3 %(16*((.Lq/320)%20) + 8*((.Lq/32)%2) + 2*((.Lq/16)%2)), %(80*(.Lq/6400) + (1-((.Lq/64)%5)/4)*(32*(((.Lq/64)%5)/2) + 8*((.Lq%16)/4) + 4*(((.Lq/64)%5)%2) + .Lq%4) + (((.Lq/64)%5)/4)*(64 + .Lq%16))
.set .Lq, .Lq+1
.endr
.noaltmacro
""")
    return "\n".join(L)

STAMPS = False
STAMP_WS = 0x3000000
def stamp(k, i):
    if not STAMPS: return
    if i == 0:
        k("s_memrealtime s[62:63]")
    k(f"s_memtime {sr(64+2*i,2)}")
def stamp_flush(k, n, slot):
    if not STAMPS: return
    k("s_memrealtime s[60:61]")
    k("s_load_dwordx2 s[58:59], s[0:1], 64")
    k("s_mov_b64 exec, -1")
    k("s_waitcnt lgkmcnt(0)")
    k("v_lshrrev_b32 v1, 6, v0")
    k("v_lshlrev_b32 v1, 6, v1")
    k(f"s_lshl_b32 s57, s2, 9")
    k(f"s_add_u32 s57, s57, {STAMP_WS + slot*0x40000}")
    k("v_add_u32 v1, s57, v1")
    k("v_mov_b32 v2, s62"); k("global_store_dword v1, v2, s[58:59]")
    k("v_mov_b32 v2, s60"); k("global_store_dword v1, v2, s[58:59] offset:4")
    for i in range(n):
        k(f"v_mov_b32 v{3+i}, s{64+2*i}"); k(f"global_store_dword v1, v{3+i}, s[58:59] offset:{8+4*i}")

def getpc(k, s, label):
    k(f"s_getpc_b64 {sr(s,2)}")
    k(f"s_add_u32 s{s}, s{s}, {label}@rel32@lo+4")
    k(f"s_addc_u32 s{s+1}, s{s+1}, {label}@rel32@hi+12")

def srd(k, s, base, off, size):
    k(f"s_add_u32 s{s}, s{base}, {off}")
    k(f"s_addc_u32 s{s+1}, s{base+1}, 0")
    k(f"s_mov_b32 s{s+2}, {size}")
    k(f"s_mov_b32 s{s+3}, 0x00020000")

def n1_of_p(k, vd, vp, t0, t1):
    k(f"v_and_b32 v{t0}, 3, v{vp}")
    k(f"v_bfe_u32 v{t1}, v{vp}, 2, 1")
    k(f"v_lshl_or_b32 v{t0}, v{t1}, 4, v{t0}")
    k(f"v_bfe_u32 v{t1}, v{vp}, 7, 2")
    k(f"v_lshl_or_b32 v{t0}, v{t1}, 2, v{t0}")
    k(f"v_bfe_u32 v{t1}, v{vp}, 9, 1")
    k(f"v_lshl_or_b32 v{t0}, v{t1}, 5, v{t0}")
    k(f"v_bfe_u32 v{t1}, v{vp}, 3, 4")
    k(f"v_lshl_or_b32 v{t0}, v{t0}, 5, v{t1}")
    k(f"v_lshrrev_b32 v{t1}, 10, v{vp}")
    k(f"v_lshl_or_b32 v{vd}, v{t1}, 4, v{t0}")

def engineA(k, mode, sid=2):
    aoff = {'p0': 0, 'p4': 64, 'wop': 40}[mode]
    stamp(k, 0)
    k(f"s_load_dwordx2 s[4:5], s[0:1], {aoff}")
    k(f"s_load_dwordx2 s[6:7], s[0:1], 64")
    if mode == 'wop':
        k(f"s_lshr_b32 s20, s{sid}, 3"); k(f"s_and_b32 s21, s{sid}, 7")
    else:
        k(f"s_and_b32 s24, s{sid}, 7"); k(f"s_lshr_b32 s25, s{sid}, 3")
        k("s_lshr_b32 s20, s24, 1"); k("s_lshl_b32 s20, s20, 3"); k("s_lshr_b32 s26, s25, 2"); k("s_add_u32 s20, s20, s26")
        k("s_and_b32 s21, s24, 1"); k("s_lshl_b32 s21, s21, 2"); k("s_and_b32 s26, s25, 3"); k("s_add_u32 s21, s21, s26")
    k("v_lshrrev_b32 v1, 6, v0")
    k("v_and_b32 v2, 63, v0")
    k("v_readfirstlane_b32 s22, v1")
    k("v_and_b32 v3, 15, v0")
    k("v_bfe_u32 v4, v0, 4, 2")
    k("v_lshlrev_b32 v5, 4, v2")
    k("s_mul_i32 s24, s21, 102400")
    k("s_mul_i32 s23, s22, 5120")
    VA = 16; VB = 96; VD = 136; VG = 156; VS = 160; VONE = 164; VRES = 168
    def dma(c):
        k(f"s_add_u32 m0, s23, {c*20480}")
        for f in range(4):
            k(f"buffer_load_dwordx4 v5, s[8:11], m0 offen offset:{f*1024} lds")
        k(f"s_add_u32 m0, s23, {c*20480+4096}")
        k(f"buffer_load_dwordx4 v5, s[8:11], m0 offen lds")
    static_b = mode in ('p0', 'wop')
    if static_b:
        getpc(k, 26, ".Ltab1")
        srd(k, 8, 26, "s24", 102400)
        for c in range(5): dma(c)
    k("s_lshl_b32 s25, s20, 6"); k("s_lshl_b32 s26, s22, 4"); k("s_add_u32 s25, s25, s26")
    k("v_add_u32 v6, s25, v3")
    if mode == 'p0':
        n1_of_p(k, 7, 6, 8, 9)
        k("v_mul_u32_u24 v7, 1280, v7"); k("v_lshl_add_u32 v7, v4, 4, v7")
    elif mode == 'p4':
        k("v_lshrrev_b32 v7, 5, v6"); k("v_mul_u32_u24 v7, 40960, v7"); k("v_lshl_add_u32 v7, v4, 9, v7")
        k("v_and_b32 v8, 31, v6"); k("v_lshl_add_u32 v7, v8, 4, v7")
    else:
        k("v_lshrrev_b32 v8, 4, v6")
        k("v_mul_u32_u24 v8, 20, v8")
        k("v_and_b32 v9, 3, v6"); k("v_add_u32 v8, v8, v9")
        k("v_bfe_u32 v10, v6, 3, 1"); k("v_lshl_add_u32 v8, v10, 2, v8")
        k("v_bfe_u32 v10, v6, 2, 1"); k("v_lshl_add_u32 v8, v10, 3, v8")
        k("v_subrev_u32 v10, 512, v6"); k("v_lshrrev_b32 v10, 2, v10")
        k("v_mul_u32_u24 v10, 20, v10"); k("v_add3_u32 v10, v10, v9, 16")
        k("v_cmp_gt_u32 vcc, 512, v6")
        k("v_cndmask_b32 v7, v10, v8, vcc")
        k("v_mul_u32_u24 v7, 1280, v7"); k("v_lshl_add_u32 v7, v4, 4, v7")
    for r in range(4): k(f"v_mov_b32 v{VONE+r}, 0x3f803f80")
    for r in range(28): k(f"v_mov_b32 v{VD+r}, 0")
    k("v_lshlrev_b32 v10, 12, v3"); k("v_lshl_add_u32 v10, v4, 3, v10")
    k("s_waitcnt lgkmcnt(0)")
    stamp(k, 1)
    if mode == 'p4':
        srd(k, 12, 6, AFO, 0x280000)
        k(f"s_add_u32 s24, s24, {WOP}")
        srd(k, 8, 6, "s24", 102400)
    else:
        srd(k, 12, 4, 0, 2048*1280 if mode == 'p0' else 640*1280)
    nvm = []
    cnt = 25 if static_b else 0
    for c in range(5):
        if not static_b:
            dma(c); cnt += 5
        for s in range(4*c, 4*c+4):
            if mode == 'p4':
                if s % 2 == 0: k(f"s_movk_i32 s27, {s*2048}" if s*2048 < 32768 else f"s_mov_b32 s27, {s*2048}")
                k(f"buffer_load_dwordx4 {vr(VA+4*s,4)}, v7, s[12:15], s27 offen offset:{(s%2)*2048}")
            else:
                k(f"buffer_load_dwordx4 {vr(VA+4*s,4)}, v7, s[12:15], 0 offen offset:{s*64}")
            cnt += 1
        nvm.append(cnt)
    k("s_mul_i32 s28, s21, 80*4096"); k("s_lshl_b32 s29, s25, 1"); k("s_add_u32 s28, s28, s29")
    if mode == 'p4':
        srd(k, 16, 6, XB, 0x280000)
        for jl in range(5):
            k(f"s_add_u32 s29, s28, {jl*65536}")
            k(f"buffer_load_dwordx2 {vr(VRES+2*jl,2)}, v10, s[16:19], s29 offen")
            cnt += 1
    total = cnt
    def breads(s):
        for jl in range(5):
            k(f"ds_read_b128 {vr(VB+20*(s%2)+4*jl,4)}, v{5 if s*5120+jl*1024 < 65536 else 11} offset:{(s*5120+jl*1024) % 65536}")
    k("v_add_u32 v11, 0x10000, v5")
    stamp(k, 2)
    k(f"s_waitcnt vmcnt({total-nvm[0]})"); k("s_barrier")
    stamp(k, 3)
    if STAMPS: k("s_waitcnt lgkmcnt(0)")
    breads(0)
    for s in range(20):
        if s+1 < 20:
            if (s+1) % 4 == 0:
                k(f"s_waitcnt vmcnt({total-nvm[(s+1)//4]})"); k("s_barrier")
                if STAMPS:
                    k("s_waitcnt lgkmcnt(0)"); stamp(k, 3+(s+1)//4); k("s_waitcnt lgkmcnt(0)")
            breads(s+1)
            k("s_waitcnt lgkmcnt(5)")
        else:
            k("s_waitcnt lgkmcnt(0)")
        for jl in range(5):
            k(f"v_mfma_f32_16x16x32_bf16 {vr(VD+4*jl,4)}, {vr(VA+4*s,4)}, {vr(VB+20*(s%2)+4*jl,4)}, {vr(VD+4*jl,4)}")
        if mode == 'p0':
            k(f"v_mfma_f32_16x16x32_bf16 {vr(VG,4)}, {vr(VA+4*s,4)}, {vr(VA+4*s,4)}, {vr(VG,4)}")
        if mode != 'p4':
            k(f"v_mfma_f32_16x16x32_bf16 {vr(VS,4)}, {vr(VA+4*s,4)}, {vr(VONE,4)}, {vr(VS,4)}")
    stamp(k, 8)
    T = VA
    lend = k.lab('end')
    if mode == 'p0':
        srd(k, 16, 6, XA, 0x280000)
        for jl in range(5):
            k(f"v_cvt_pk_bf16_f32 v{T+2*jl}, v{VD+4*jl}, v{VD+4*jl+1}")
            k(f"v_cvt_pk_bf16_f32 v{T+2*jl+1}, v{VD+4*jl+2}, v{VD+4*jl+3}")
            k(f"s_add_u32 s29, s28, {jl*65536}")
            k(f"buffer_store_dwordx2 {vr(T+2*jl,2)}, v10, s[16:19], s29 offen")
        k("s_cmp_lg_u32 s21, 0"); k(f"s_cbranch_scc1 {lend}")
        k("v_and_b32 v12, 3, v3")
        for r in range(1, 4):
            k(f"v_cmp_eq_u32 vcc, {r}, v12")
            k(f"v_cndmask_b32 v{VG}, v{VG}, v{VG+r}, vcc")
            k(f"v_cndmask_b32 v{VS}, v{VS}, v{VS+r}, vcc")
        k(f"v_mul_f32 v13, {float(1/640).hex() if False else hex(np.float32(1/640).view(np.uint32))}, v{VS}")
        k(f"v_fma_f32 v14, -v13, v{VS}, v{VG}")
        k("v_max_f32 v14, 0, v14")
        k("v_lshrrev_b32 v12, 2, v3")
        k("v_cmp_eq_u32 vcc, v12, v4")
        k("v_lshlrev_b32 v15, 2, v6")
        srd(k, 16, 6, SSQ0, 0x8000)
        k("s_mov_b64 exec, vcc")
        k("buffer_store_dword v14, v15, s[16:19], 0 offen")
        k(f"s_movk_i32 s29, {DC0-SSQ0}")
        k("buffer_store_dword v13, v15, s[16:19], s29 offen")
    elif mode == 'wop':
        k("s_lshr_b32 s29, s25, 5"); k("s_mul_i32 s29, s29, 5120"); k("s_add_u32 s29, s29, s24")
        k("s_and_b32 s30, s22, 1"); k("s_lshl_b32 s30, s30, 9"); k("s_add_u32 s29, s29, s30")
        k("v_lshrrev_b32 v12, 1, v4"); k("v_lshlrev_b32 v12, 8, v12"); k("v_lshl_add_u32 v12, v3, 4, v12")
        k("v_and_b32 v13, 1, v4"); k("v_lshl_add_u32 v12, v13, 3, v12")
        srd(k, 16, 6, WOP, 819200)
        k("s_cmp_eq_u32 s21, 0"); k("s_cselect_b32 s30, 1, 99")
        k("v_cmp_eq_u32 vcc, s30, v3")
        for r in range(4):
            k(f"v_mul_f32 v{VS+r}, {hex(np.float32(1/640).view(np.uint32))}, v{VS+r}")
            k(f"v_cndmask_b32 v{VD+r}, v{VD+r}, v{VS+r}, vcc")
        for jl in range(5):
            k(f"v_cvt_pk_bf16_f32 v{T+2*jl}, v{VD+4*jl}, v{VD+4*jl+1}")
            k(f"v_cvt_pk_bf16_f32 v{T+2*jl+1}, v{VD+4*jl+2}, v{VD+4*jl+3}")
            if jl == 4: k("s_add_u32 s29, s29, 4096")
            k(f"buffer_store_dwordx2 {vr(T+2*jl,2)}, v12, s[16:19], s29 offen offset:{(jl%4)*1024}")
    else:
        k("s_waitcnt vmcnt(0)")
        srd(k, 16, 6, XA, 0x280000)
        srd(k, 12, 6, SSQ2, 0x8000)
        k("s_cmp_eq_u32 s21, 0"); k("s_cselect_b32 s30, 1, 99")
        k("v_cmp_eq_u32 vcc, s30, v3")
        k("v_lshlrev_b32 v15, 4, v4"); k("s_lshl_b32 s31, s25, 2"); k(f"s_add_u32 s31, s31, {DCD-SSQ2}")
        lsk = k.lab('sk')
        k("s_cmp_lg_u32 s21, 0"); k(f"s_cbranch_scc1 {lsk}")
        k("s_mov_b64 exec, vcc")
        k(f"buffer_store_dwordx4 {vr(VD,4)}, v15, s[12:15], s31 offen")
        k("s_mov_b64 exec, -1")
        k(f"{lsk}:")
        for r in range(4): k(f"v_cndmask_b32 v{VD+r}, v{VD+r}, 0, vcc")
        for jl in range(5):
            for h in range(2):
                k(f"v_lshlrev_b32 v{T}, 16, v{VRES+2*jl+h}"); k(f"v_and_b32 v{T+1}, 0xffff0000, v{VRES+2*jl+h}")
                k(f"v_add_f32 v{VD+4*jl+2*h}, v{VD+4*jl+2*h}, v{T}"); k(f"v_add_f32 v{VD+4*jl+2*h+1}, v{VD+4*jl+2*h+1}, v{T+1}")
            k(f"v_cvt_pk_bf16_f32 v{T+4+2*jl}, v{VD+4*jl}, v{VD+4*jl+1}")
            k(f"v_cvt_pk_bf16_f32 v{T+4+2*jl+1}, v{VD+4*jl+2}, v{VD+4*jl+3}")
            k(f"s_add_u32 s29, s28, {jl*65536}")
            k(f"buffer_store_dwordx2 {vr(T+4+2*jl,2)}, v10, s[16:19], s29 offen")
        for r in range(4):
            k(f"v_mul_f32 v{VG+r}, v{VD+r}, v{VD+r}")
        for jl in range(1, 5):
            for r in range(4): k(f"v_fmac_f32 v{VG+r}, v{VD+4*jl+r}, v{VD+4*jl+r}")
        for sh in (8, 4, 2, 1):
            for r in range(4): k(f"v_add_f32_dpp v{VG+r}, v{VG+r}, v{VG+r} row_ror:{sh} row_mask:0xf bank_mask:0xf")
        for r in range(1, 4):
            k(f"v_cmp_eq_u32 vcc, {r}, v3")
            k(f"v_cndmask_b32 v{VG}, v{VG}, v{VG+r}, vcc")
        k("v_cmp_gt_u32 vcc, 4, v3")
        k("v_lshl_add_u32 v15, v3, 2, v15")
        k("s_lshl_b32 s31, s25, 2")
        k("s_mov_b64 exec, vcc")
        k(f"buffer_atomic_add_f32 v{VG}, v15, s[12:15], s31 offen")
    k(f"{lend}:")
    if STAMPS:
        stamp(k, 9); k("s_waitcnt vmcnt(0)"); stamp(k, 10)
    stamp_flush(k, 11, {'p0': 0, 'wop': 1, 'p4': 2}[mode])
    k("s_endpgm")

def simple_kernel(name, nwg, fn, vgprs=192, sgprs=96, agprs=0):
    k = Kern(name, vgprs=vgprs, sgprs=sgprs, agprs=agprs)
    lx = k.lab('x')
    k(f"s_cmp_ge_u32 s2, {nwg}"); k(f"s_cbranch_scc1 {lx}")
    fn(k)
    k(f"{lx}:"); k("s_endpgm")
    return k

def blocker():
    k = Kern("blk", vgprs=8, sgprs=16)
    k("s_mov_b32 s3, 0")
    l = k.lab()
    k(f"{l}:"); k("s_sleep 127"); k("s_add_u32 s3, s3, 1"); k("s_cmp_lt_u32 s3, 60"); k(f"s_cbranch_scc1 {l}"); k("s_endpgm")
    return (k, 1, 64, 0)

def asmcheck(path):
    import subprocess
    r = subprocess.run(["clang", "-x", "assembler", "-target", "amdgcn-amd-amdhsa", "-mcpu=gfx950", "-c", path, "-o", "chk.o"], capture_output=True, text=True)
    if r.returncode: print(r.stderr[:1500]); raise SystemExit(1)

def build(launches, path, extra=''):
    hdr = [f"; @launch kernel={k.name}_kernel grid=({n},1,1) block=({b},1,1) lds={l}" for k, n, b, l in launches]
    seen = {}
    for k, *_ in launches: seen[k.name] = k
    txt = "\n".join(hdr) + '\n.amdgcn_target "amdgcn-amd-amdhsa--gfx950"\n.text\n'
    txt += "".join(k.text() for k in seen.values())
    txt += '.section .rodata,"a"\n' + "".join(k.desc() for k in seen.values()) + tables() + extra
    open(path, "w").write(txt)
    for k in seen.values(): print(k.name, k.maxregs, len(k.lines))
    asmcheck(path)

if __name__ == "__main__":
    STAMPS = "stamps" in sys.argv
    emp = simple_kernel("emp", 256, lambda k: None)
    p0 = simple_kernel("p0", 256, lambda k: engineA(k, 'p0'))
    wop = simple_kernel("wop", 80, lambda k: engineA(k, 'wop'))
    p4 = simple_kernel("p4", 256, lambda k: engineA(k, 'p4'))
    build([blocker(), (p0, 256, 256, 102400), (wop, 80, 256, 102400), (p4, 256, 256, 102400), (p0, 256, 256, 102400), (p4, 256, 256, 102400), (emp, 256, 256, 102400), (emp, 256, 256, 102400), (emp, 256, 256, 0), (emp, 1, 64, 0)], "t1.s")
```

```python
import numpy as np
S, D, H, Dh = 2048, 640, 32, 20
XA   = 0x0000000
XB   = 0x0280000
AFO  = 0x0500000
AFX  = 0x0780000
Q16  = 0x0A00000
Q4   = 0x0C00000
KV   = 0x0C80000
GP   = 0x1180000
WOP  = 0x1400000
WOT  = 0x1500000
WT   = 0x1600000
SSQ0 = 0x1880000
SSQ2 = 0x1882000
DC0  = 0x1884000
DCD  = 0x1886000
KMAX = 0x1888000
WS_END = 0x1900000

p = np.arange(S)
_r = p & 3; _u = (p >> 2) & 1; _i = (p >> 3) & 15; _g = (p >> 7) & 3; _s = (p >> 9) & 1; _ta = p >> 10
N1_OF_P = (16*_ta + _i) + 32*(32*_s + 16*_u + 4*_g + _r)

def c_of_kpos(kp):
    s, g, jj = kp >> 5, (kp >> 3) & 3, kp & 7
    if s < 16:
        head = 2*s + (g >> 1); hf = g & 1; d = (jj & 3) + 4*hf + 8*(jj >> 2)
    else:
        head = 8*(s-16) + 2*g + (jj >> 2); d = 16 + (jj & 3)
    return 20*head + d
C_OF_KPOS = np.array([c_of_kpos(k) for k in range(640)])
def j_of_kpos(kp):
    s, g, jj = kp >> 5, (kp >> 3) & 3, kp & 7
    s16 = 2*s + (g >> 1); hf = g & 1
    return 16*s16 + (jj & 3) + 4*hf + 8*(jj >> 2)
J_OF_KPOS = np.array([j_of_kpos(k) for k in range(640)])

def bf16(x):
    x32 = np.ascontiguousarray(x, dtype=np.float32)
    u = x32.view(np.uint32)
    r = ((u + 0x7FFF + ((u >> 16) & 1)) & 0xFFFF0000).astype(np.uint32)
    return r.view(np.float32)
def bf16bits(x):
    u = np.ascontiguousarray(x, dtype=np.float32).view(np.uint32)
    return ((u + 0x7FFF + ((u >> 16) & 1)) >> 16).astype(np.uint16)
def unbf(u):
    return (u.astype(np.uint32) << 16).view(np.float32)
def Fmat():
    n = np.arange(D)
    ct = np.sqrt(2/D)*np.cos(2*np.pi*np.arange(D)/D)
    ct[160] = 0; ct[480] = 0
    F = np.zeros((D, D))
    F[:, 0] = (-1.0)**n / np.sqrt(D)
    for k in range(1, 320):
        F[:, 2*k] = ct[(k*n) % D]
        F[:, 2*k+1] = ct[(k*n + 160) % D]
    return F
```

```python
import sys
from gen import *
from cf import *
from eb import *
from attn import *
from ea import *
p0 = simple_kernel("p0", 256, lambda k: engineA2(k, 'p0'))
wop = simple_kernel("wop", 80, lambda k: engineA2(k, 'wop'))
p4 = simple_kernel("p4", 256, lambda k: engineA2(k, 'p4'))
fin = simple_kernel("fin", 256, lambda k: engineA2(k, 'fin'))
wtp = simple_kernel("wtp", 80, lambda k: wtpack(k), vgprs=72)
wot = simple_kernel("wot", 40, lambda k: wotpack(k), vgprs=72)
cf1 = simple_kernel("cf1", 320, lambda k: colfilter(k, XA, XB, SSQ0, zero_ssq2=True), vgprs=248)
cf2 = simple_kernel("cf2", 320, lambda k: colfilter(k, XA, XB, SSQ2), vgprs=248)
gp = simple_kernel("gp", 75, lambda k: engineB(k, 'gp'), vgprs=208)
qkv = simple_kernel("qkv", 240, lambda k: engineB(k, 'qkv', afx=True), vgprs=208)
at = simple_kernel("at", 256, lambda k: attention(k), vgprs=208)
L = [(p0, 256, 256, EA_LDS), (wtp, 80, 256, 0), (wot, 40, 256, 0), (wop, 80, 256, EA_LDS), (gp, 75, 256, EB_LDS),
     (cf1, 320, 256, CF_LDS), (qkv, 240, 256, EB_LDS), (at, 256, 512, AT_LDS), (p4, 256, 256, EA_LDS),
     (cf2, 320, 256, CF_LDS), (qkv, 240, 256, EB_LDS), (at, 256, 512, AT_LDS), (fin, 256, 256, EA_LDS)]
build(L, f"../cdna_kernels/{NAME}.s", cf_tables())
build([blocker()] + L, "full_q.s", cf_tables())
```

```python
import numpy as np
from asmlib import *
from layout import *
from gen import getpc, srd, Stamper, pf_text
AT_LDS = 163840

def attention(k, sid=2):
    SB = 16; P = 48; NM = 56; O = 88; KB = 120; VB = 140; Q = 172; AD = 188; MX = 200
    st = Stamper(k); st("start")
    k("s_load_dwordx2 s[4:5], s[0:1], 64")
    k("v_lshrrev_b32 v1, 6, v0"); k("v_and_b32 v2, 63, v0")
    k("v_readfirstlane_b32 s22, v1")
    k(f"s_and_b32 s20, s{sid}, 7"); k("s_lshl_b32 s20, s20, 2"); k(f"s_bfe_u32 s21, s{sid}, 0x20003"); k("s_add_u32 s20, s20, s21")
    k(f"s_lshr_b32 s21, s{sid}, 5")
    k("s_and_b32 s23, s22, 3"); k("s_lshr_b32 s24, s22, 2")
    k("v_lshlrev_b32 v3, 4, v2")
    k("v_and_b32 v4, 31, v2"); k("v_lshrrev_b32 v5, 5, v2")
    k("v_lshlrev_b32 v6, 3, v4")
    k("s_lshl_b32 s25, s21, 3"); k("s_lshl_b32 s26, s23, 1"); k("s_add_u32 s25, s25, s26")
    k("s_add_u32 s26, s25, s24"); k("s_xor_b32 s27, s26, 1")
    k("s_lshl_b32 s28, s20, 6")
    for t in range(2):
        k(f"s_add_u32 s29, s28, s{26+t}")
        k(f"s_lshl_b32 s{30+t}, s29, 10"); k(f"s_add_u32 s{30+t}, s{30+t}, {Q16}")
        k(f"s_lshl_b32 s{32+t}, s29, 8"); k(f"s_add_u32 s{32+t}, s{32+t}, {Q4}")
    k("s_mul_i32 s29, s20, 163840"); k(f"s_add_u32 s29, s29, {KV}")
    k("s_lshl_b32 s34, s22, 10")
    k("s_mov_b32 s36, 0x000fffff"); k("s_mov_b32 s37, 0x000fffff")
    k("s_mov_b32 s38, 0")
    k("s_mul_i32 s35, s24, 5120")
    k(f"v_add_u32 v{AD}, s35, v3")
    k(f"v_lshl_add_u32 v{AD+1}, v2, 3, s35")
    k("v_mad_u32_u24 v7, v5, 20, v4"); k(f"v_lshl_add_u32 v{AD+2}, v7, 4, s35")
    for sg in range(1, 3):
        for j in range(3): k(f"v_add_u32 v{AD+3*sg+j}, 61440, v{AD+3*(sg-1)+j}")
    k("v_cmp_eq_u32 vcc, 20, v4"); k("v_cmp_eq_u32 s[40:41], 24, v4"); k("s_or_b64 vcc, vcc, s[40:41]")
    k("v_mov_b32 v7, 0x3f803f80"); k(f"v_cndmask_b32 v{VB}, 0, v7, vcc")
    for r in range(1, 32): k(f"v_mov_b32 v{VB+r}, v{VB}")
    k("s_waitcnt lgkmcnt(0)")
    st("karg")
    srd(k, 8, 4, "s29", 163840)
    srd(k, 16, 4, 0, WS_END)
    def dma(r): return [f"s_add_u32 m0, s34, {r*8192}", "buffer_load_dwordx4 v3, s[8:11], m0 offen lds"]
    for t in range(2):
        k(f"buffer_load_dwordx4 {vr(Q+8*t,4)}, v3, s[16:19], s{30+t} offen")
        k(f"buffer_load_dwordx2 {vr(Q+8*t+4,2)}, v6, s[16:19], s{32+t} offen")
    for r in range(5):
        for x in dma(r): k(x)
    k("v_cmp_eq_u32 vcc, 0, v5")
    k("s_waitcnt vmcnt(5)")
    for t in range(2):
        for j in range(2):
            k(f"v_cndmask_b32 v{Q+8*t+6+j}, v{Q+8*t+4+j}, 0, vcc")
            k(f"v_cndmask_b32 v{Q+8*t+4+j}, 0, v{Q+8*t+4+j}, vcc")
    k("s_waitcnt vmcnt(3)"); k("s_barrier"); st("bar0")
    def kreads(it):
        sg, o = it // 6, (it % 6)*10240; b = KB+10*(it % 2)
        return [f"ds_read_b128 {vr(b,4)}, v{AD+3*sg} offset:{o}", f"ds_read_b64 {vr(b+8,2)}, v{AD+3*sg+1} offset:{o+2048}",
                f"ds_read_b128 {vr(b+4,4)}, v{AD+3*sg} offset:{o+1024}"]
    def vreads(it):
        sg, o = it // 6, (it % 6)*10240; b = VB+16*(it % 2)
        return ["s_mov_b64 exec, s[36:37]"] + [f"ds_read_b128 {vr(b+4*j,4)}, v{AD+3*sg+2} offset:{o+2560+640*j}" for j in range(4)] + ["s_mov_b64 exec, -1"]
    def s16(d, kb, kt, t, c): return f"v_mfma_f32_32x32x16_bf16 {vr(d,16)}, {vr(kb+4*kt,4)}, {vr(Q+8*t,4)}, {c}"
    def s8(d, kb, kt, t): return f"v_mfma_f32_32x32x8bf16_1k {vr(d,16)}, {vr(kb+8,2)}, {vr(Q+8*t+4+2*kt,2)}, {vr(d,16)}"
    def maxinto(m, d, first):
        if first: k(f"v_max_f32 v{m}, v{d}, v{d+1}")
        else: k(f"v_max3_f32 v{m}, v{d}, v{d+1}, v{m}")
        for j in range(1, 8): k(f"v_max3_f32 v{m}, v{d+2*j}, v{d+2*j+1}, v{m}")
    def fill_negm():
        k(f"v_permlane32_swap_b32 v{MX}, v{MX+1}")
        k(f"v_max_f32 v{MX}, v{MX}, v{MX+1}")
        k(f"v_mov_b32 v{MX+1}, v{MX}")
        k(f"v_permlane32_swap_b32 v{MX}, v{MX+1}")
        for t in range(2):
            k(f"v_sub_f32 v{NM+16*t}, 0, v{MX+t}"); k(f"v_sub_f32 v{NM+16*t+1}, 0, v{MX+t}")
        for j in range(1, 8):
            for t in range(2): k(f"v_mov_b64 {vr(NM+16*t+2*j,2)}, {vr(NM+16*t,2)}")
    for x in kreads(0)[:2]: k(x)
    k("s_waitcnt lgkmcnt(0)")
    for t in range(2): k(s16(SB+16*t, KB, 0, t, '0'))
    for t in range(2): k(s8(SB+16*t, KB, 0, t))
    for t in range(2): maxinto(MX+t, SB+16*t, True)
    fill_negm()
    st("minit")
    lmain = k.lab('main'); k(f"{lmain}:")
    for x in kreads(0) + vreads(0): k(x)
    k("s_waitcnt lgkmcnt(5)")
    k(s16(SB, KB, 0, 0, vr(NM, 16))); k(s8(SB, KB, 0, 0))
    NT = 64
    def tinfo(i): return i // 4, (i >> 1) & 1, i & 1
    def pv(i, h):
        it, kt, t = tinfo(i)
        c = '0' if (i < 2 and h == 0) else vr(O+16*t, 16)
        return f"v_mfma_f32_32x32x16_bf16 {vr(O+16*t,16)}, {vr(VB+16*(it % 2)+8*kt+4*h,4)}, {vr(P+4*h,4)}, {c}"
    def prefetch():
        l2 = k.lab('pf2'); le = k.lab('pfe')
        k(f"s_lshr_b32 s43, s{sid}, 3"); k("s_lshl_b32 s43, s43, 9"); k("v_add_u32 v14, s43, v0")
        k(f"s_and_b32 s43, s{sid}, 7")
        k("v_lshlrev_b32 v15, 7, v14")
        k("s_cmp_lg_u32 s42, 0"); k(f"s_cbranch_scc1 {l2}")
        srd(k, 44, 4, WOP, 819200); k("buffer_load_dword v13, v15, s[44:47], 0 offen")
        k("s_and_b32 s48, s43, 1"); k("s_mul_i32 s48, s48, 1310720"); k(f"s_add_u32 s48, s48, {GP}")
        srd(k, 44, 4, "s48", 1310720); k("buffer_load_dword v13, v15, s[44:47], 0 offen")
        k("v_lshrrev_b32 v12, 2, v14"); k("v_lshlrev_b32 v12, 12, v12"); k("v_and_b32 v11, 0x180, v15"); k("v_add_u32 v12, v12, v11")
        k("s_lshl_b32 s48, s43, 9"); k("v_add_u32 v12, s48, v12")
        srd(k, 44, 4, XB, 640*4096); k("buffer_load_dword v13, v12, s[44:47], 0 offen")
        k("v_lshrrev_b32 v12, 6, v14"); k("v_lshlrev_b32 v12, 16, v12"); k("v_and_b32 v11, 0x1f80, v15"); k("v_add_u32 v12, v12, v11")
        k("s_lshl_b32 s48, s43, 13"); k("v_add_u32 v12, s48, v12")
        srd(k, 44, 4, WT, 320*8192); k("buffer_load_dword v13, v12, s[44:47], 0 offen")
        k(f"s_branch {le}")
        k(f"{l2}:")
        srd(k, 44, 4, WOT, 819200); k("buffer_load_dword v13, v15, s[44:47], 0 offen")
        getpc(k, 48, ".Ltab3"); srd(k, 44, 48, 0, 819200); k("buffer_load_dword v13, v15, s[44:47], 0 offen")
        k("s_mul_i32 s48, s43, 327680"); k(f"s_add_u32 s48, s48, {AFX}")
        srd(k, 44, 4, "s48", 327680); k("buffer_load_dword v13, v15, s[44:47], 0 offen")
        k(f"{le}:")
        for x in pf_text(sid, 512, 44, 15, 13)[0]: k(x)
    rnd = 5
    bars = {1: 2, 2: 4, 4: 11, 9: 19}
    issued = 5
    have = 1
    for it_ in range(16):
        have = bars.get(it_, have); assert (have+1)*8192 >= (it_+1)*10240
    for i in range(NT):
        it, kt, t = tinfo(i)
        sb = SB+16*(i % 2); sn = SB+16*((i+1) % 2)
        e = lambda r: k(f"v_exp_f32 v{sb+r}, v{sb+r}")
        c = lambda j: k(f"v_cvt_pk_bf16_f32 v{P+j}, v{sb+2*j}, v{sb+2*j+1}")
        nx = i+1 < NT
        if i in (3, 7, 15, 31, 47): st(f"t{i}")
        if nx:
            it2, kt2, t2 = tinfo(i+1); kb2 = KB+10*(it2 % 2)
            if i == 1: k("s_waitcnt lgkmcnt(7)")
            if i % 4 == 3: k("s_waitcnt lgkmcnt(0)")
            k(s16(sn, kb2, kt2, t2, vr(NM+16*t2, 16)))
        e(0)
        if i > 0: k(pv(i-1, 1))
        if i % 4 == 0 and it+1 < 16:
            if it+1 in bars:
                lb = k.lab('nb')
                k("s_cmp_lg_u32 s38, 0"); k(f"s_cbranch_scc1 {lb}")
                assert issued-1-bars[it+1] >= 0
                k(f"s_waitcnt vmcnt({issued-1-bars[it+1]})"); k("s_barrier")
                k(f"{lb}:")
            for x in kreads(it+1) + vreads(it+1): k(x)
        if i == 40: prefetch()
        e(1); e(2); e(3)
        if nx: k(s8(sn, kb2, kt2, t2))
        e(4); e(5); c(0); e(6); c(1); e(7); c(2)
        if issued < 20:
            for x in dma(issued): k(x)
            issued += 1
        e(8); c(3); e(9); e(10)
        if i == 0: k("s_waitcnt lgkmcnt(7)")
        k(pv(i, 0))
        e(11); e(12); c(4); e(13); c(5); e(14); e(15); c(6); c(7)
    k(pv(NT-1, 1))
    st("loop")
    k("v_cmp_eq_u32 vcc, 0, v5")
    for t in range(2): k(f"v_cndmask_b32 v{O+16*t+12}, v{O+16*t+8}, v{O+16*t+12}, vcc")
    k(f"v_add_f32 v7, v{O+12}, v{O+28}")
    k("v_cmp_nle_f32 vcc, v7, 0x5f000000") if False else k("v_mov_b32 v8, 0x5f000000")
    k("v_cmp_nle_f32 vcc, v7, v8")
    lfb = k.lab('fb'); lcomb = k.lab('comb')
    k("s_cmp_lg_u32 s38, 0"); k(f"s_cbranch_scc1 {lcomb}")
    k(f"s_cbranch_vccnz {lfb}")
    k(f"{lcomb}:")
    k(f"v_mov_b32 v{O+16+13}, v{NM+16}")
    k("s_lshl_b32 s35, s22, 12"); k("v_add_u32 v8, s35, v3"); k("s_xor_b32 s35, s35, 0x4000"); k("v_add_u32 v9, s35, v3")
    k("s_waitcnt vmcnt(0) lgkmcnt(0)"); k("s_barrier")
    for j in range(4): k(f"ds_write_b128 v9, {vr(O+16+4*j,4)} offset:{1024*j}")
    k("s_mul_i32 s28, s26, 40960"); k(f"s_add_u32 s28, s28, {AFO}")
    k("s_lshl_b32 s29, s20, 10"); k("s_add_u32 s29, s29, s28")
    k("s_lshr_b32 s30, s20, 1"); k("s_lshl_b32 s30, s30, 9"); k("s_and_b32 s31, s20, 1"); k("s_lshl_b32 s31, s31, 3")
    k("s_add_u32 s30, s30, s31"); k("s_add_u32 s30, s30, s28"); k("s_add_u32 s30, s30, 32768")
    k("s_waitcnt lgkmcnt(0)"); k("s_barrier")
    X = SB
    k(f"ds_read_b128 {vr(X+12,4)}, v8 offset:3072")
    for j in range(3): k(f"ds_read_b128 {vr(X+4*j,4)}, v8 offset:{1024*j}")
    k("s_waitcnt lgkmcnt(3)")
    k(f"v_min_f32 v10, v{NM}, v{X+13}")
    k(f"v_sub_f32 v11, v10, v{NM}"); k(f"v_sub_f32 v12, v10, v{X+13}")
    k("v_exp_f32 v11, v11"); k("v_exp_f32 v12, v12")
    k(f"v_mul_f32 v10, v11, v{O+12}"); k(f"v_fmac_f32 v10, v12, v{X+12}")
    k("v_rcp_f32 v10, v10")
    k("v_mul_f32 v11, v11, v10"); k("v_mul_f32 v12, v12, v10")
    for r in range(12): k(f"v_mul_f32 v{O+r}, v11, v{O+r}")
    k("s_waitcnt lgkmcnt(0)")
    for r in range(12): k(f"v_fmac_f32 v{O+r}, v12, v{X+r}")
    for q in range(6): k(f"v_cvt_pk_bf16_f32 v{P+q}, v{O+2*q}, v{O+2*q+1}")
    k(f"buffer_store_dwordx4 {vr(P,4)}, v3, s[16:19], s29 offen")
    k("s_mov_b64 exec, 0xffffffff") if False else (k("s_mov_b32 exec_hi, 0"))
    k(f"buffer_store_dwordx2 {vr(P+4,2)}, v3, s[16:19], s30 offen")
    st("st"); st.flush()
    k("s_endpgm")
    k(f"{lfb}:")
    k("s_mov_b32 s38, 1"); k("s_mov_b32 s39, 0")
    k(f"v_mov_b32 v10, v{AD}"); k(f"v_mov_b32 v11, v{AD+1}")
    k(f"v_mov_b32 v{MX}, 0xff800000"); k(f"v_mov_b32 v{MX+1}, 0xff800000")
    ll = k.lab('fl'); k(f"{ll}:")
    k(f"ds_read_b128 {vr(KB,4)}, v10"); k(f"ds_read_b64 {vr(KB+8,2)}, v11 offset:2048"); k(f"ds_read_b128 {vr(KB+4,4)}, v10 offset:1024")
    k("s_waitcnt lgkmcnt(0)")
    for kt in range(2):
        for t in range(2): k(s16(SB+16*t, KB, kt, t, '0'))
        for t in range(2): k(s8(SB+16*t, KB, kt, t))
        for t in range(2): maxinto(MX+t, SB+16*t, False)
    k("v_add_u32 v10, 10240, v10"); k("v_add_u32 v11, 10240, v11")
    k("s_add_u32 s39, s39, 1"); k("s_cmp_lt_u32 s39, 16"); k(f"s_cbranch_scc1 {ll}")
    fill_negm()
    k(f"s_branch {lmain}")
```

```python
import numpy as np
from asmlib import *
from layout import *
from gen import getpc, srd, Stamper, pf_text

def f32hex(x): return hex(int(np.float32(x).view(np.uint32)))

def cf_tables():
    l = np.arange(64); g = l >> 4; n = l & 15; e = np.arange(8); u = e >> 2; r = e & 3
    out = []
    for t in range(4):
        for st in range(2):
            b = 32*st + 16*u[None, :] + 4*g[:, None] + r[None, :]
            d = 16*t + n[:, None]
            w = np.exp(-2j*np.pi*((b*d) % 64)/64)/8
            out += [w.real, w.imag]
    for t in range(2):
        a = 16*u[None, :] + 4*g[:, None] + r[None, :]
        c = 16*t + n[:, None]
        w = np.exp(-2j*np.pi*((a*c) % 32)/32)/np.sqrt(32)
        out += [w.real, w.imag]
    arr = np.array(out); arr[np.abs(arr) < 1e-9] = 0
    u32 = arr.astype(np.float16).reshape(-1).view(np.uint32)
    L = [".p2align 8", ".Ltabcf:"]
    for i in range(0, len(u32), 16):
        L.append(".long " + ",".join(hex(int(x)) for x in u32[i:i+16]))
    return "\n".join(L) + "\n"

CF_LDS = 36880
def colfilter(k, xin, xout, ssq, sid=2, zero_ssq2=False):
    TAB, DATA, EXC, MX = 0, 20480, 28672, 36864
    XR, XI, SS, WTr = 8, 12, 16, 24
    C1, S1, C2, S2 = 32, 40, 48, 56
    DF = 64; T1 = 96; T4 = 120; T32 = 168; AC1 = 192; AC2 = 208; PB = 224; WF = 232
    stp = Stamper(k); stp("start")
    k("s_load_dwordx2 s[4:5], s[0:1], 64")
    k("v_lshrrev_b32 v4, 6, v0")
    k("v_and_b32 v5, 63, v0")
    k("v_readfirstlane_b32 s22, v4")
    k("v_lshlrev_b32 v1, 4, v5")
    k("v_bfe_u32 v2, v0, 4, 2")
    k("v_and_b32 v3, 15, v0")
    getpc(k, 26, ".Ltabcf")
    srd(k, 8, 26, 0, 20480)
    k("s_mul_i32 s23, s22, 5120")
    k("s_mov_b32 m0, s23")
    for f in range(4): k(f"buffer_load_dwordx4 v1, s[8:11], m0 offen offset:{f*1024} lds")
    k("s_add_u32 m0, s23, 4096")
    k("buffer_load_dwordx4 v1, s[8:11], m0 offen lds")
    k("s_and_b32 s24, s22, 1"); k("s_lshr_b32 s25, s22, 1")
    k("s_lshl_b32 s26, s24, 11"); k("s_lshl_b32 s27, s25, 10"); k("s_add_u32 s26, s26, s27")
    k(f"s_lshl_b32 s27, s{sid}, 13")
    k("s_add_u32 s28, s27, s26")
    k(f"s_add_u32 s29, s28, {xin}"); k(f"s_add_u32 s30, s28, {xout}")
    k(f"s_add_u32 s34, s29, 4096"); k(f"s_add_u32 s35, s30, 4096")
    k("s_lshl_b32 s31, s26, 1"); k(f"s_add_u32 s31, s31, {ssq}")
    k("s_lshl_b32 s32, s22, 11"); k("s_add_u32 s32, s32, s27"); k(f"s_add_u32 s32, s32, {WT}")
    k("v_lshlrev_b32 v6, 1, v1")
    k("s_waitcnt lgkmcnt(0)")
    stp("karg")
    srd(k, 12, 4, 0, WS_END)
    k(f"buffer_load_dwordx4 {vr(XR,4)}, v1, s[12:15], s29 offen")
    k(f"buffer_load_dwordx4 {vr(XI,4)}, v1, s[12:15], s34 offen")
    k(f"buffer_load_dwordx4 {vr(SS,4)}, v6, s[12:15], s31 offen")
    k(f"buffer_load_dwordx4 {vr(SS+4,4)}, v6, s[12:15], s31 offen offset:16")
    k(f"buffer_load_dwordx4 {vr(WTr,4)}, v6, s[12:15], s32 offen")
    k(f"buffer_load_dwordx4 {vr(WTr+4,4)}, v6, s[12:15], s32 offen offset:16")
    k("s_lshl_b32 s33, s22, 4")
    k("v_add_u32 v4, s33, v3"); k("v_cvt_f32_u32 v4, v4"); k(f"v_mul_f32 v4, {f32hex(1/2048)}, v4")
    k("v_lshlrev_b32 v5, 2, v2"); k("v_cvt_f32_u32 v7, v5")
    k(f"v_mul_f32 v{S1}, v4, v7")
    for r in range(1, 4): k(f"v_add_f32 v{S1+r}, v{S1+r-1}, v4")
    k(f"v_mul_f32 v4, {f32hex(16.0)}, v4")
    for r in range(4): k(f"v_add_f32 v{S1+4+r}, v{S1+r}, v4")
    k("v_add_u32 v5, s33, v5"); k("v_cvt_f32_u32 v5, v5")
    k("v_cvt_f32_u32 v4, v3"); k(f"v_mul_f32 v4, {f32hex(1/2048)}, v4")
    k(f"v_add_f32 v7, {f32hex(16/2048)}, v4")
    k(f"v_mul_f32 v{S2}, v4, v5"); k(f"v_mul_f32 v{S2+4}, v7, v5")
    for r in range(1, 4):
        k(f"v_add_f32 v{S2+r}, v{S2+r-1}, v4"); k(f"v_add_f32 v{S2+4+r}, v{S2+4+r-1}, v7")
    for r in range(8):
        k(f"v_cos_f32 v{C1+r}, v{S1+r}"); k(f"v_sin_f32 v{S1+r}, v{S1+r}")
    for r in range(8):
        k(f"v_cos_f32 v{C2+r}, v{S2+r}"); k(f"v_sin_f32 v{S2+r}, v{S2+r}")
    k(f"s_lshl_b32 s36, s24, 12"); k("s_lshl_b32 s37, s25, 11"); k("s_add_u32 s36, s36, s37")
    k("v_add_u32 v4, s36, v1")
    k(f"v_mov_b32 v7, {f32hex(1e-5)}")
    stp("tw"); k("s_waitcnt vmcnt(2)"); stp("ld")
    for e in range(8): k(f"v_fmamk_f32 v{SS+e}, v{SS+e}, {f32hex(1/640)}, v7")
    for e in range(8): k(f"v_rsq_f32 v{SS+e}, v{SS+e}")
    for ri, X in ((0, XR), (1, XI)):
        for q in range(4):
            k(f"v_lshlrev_b32 v{WF+2*q}, 16, v{X+q}"); k(f"v_and_b32 v{WF+2*q+1}, 0xffff0000, v{X+q}")
        for q in range(4):
            k(f"v_fma_mixlo_f16 v{PB+4*ri+q}, v{WF+2*q}, v{SS+2*q}, 0")
        for q in range(4):
            k(f"v_fma_mixhi_f16 v{PB+4*ri+q}, v{WF+2*q+1}, v{SS+2*q+1}, 0")
        k(f"ds_write_b128 v4, {vr(PB+4*ri,4)} offset:{DATA+ri*1024}")
    k("s_waitcnt vmcnt(0)")
    k(f"s_and_b32 s40, s{sid}, 1"); k("s_mul_i32 s40, s40, 1310720"); k(f"s_lshr_b32 s41, s{sid}, 3"); k("s_lshl_b32 s41, s41, 15")
    k("s_add_u32 s40, s40, s41"); k(f"s_add_u32 s40, s40, {GP}"); k("v_lshlrev_b32 v248, 7, v0")
    k("buffer_load_dword v249, v248, s[12:15], s40 offen")
    for x in pf_text(sid, 256, 44, 248, 250)[0]: k(x)
    for e in range(8):
        k(f"v_lshlrev_b32 v{WF+2*e}, 16, v{WTr+e}"); k(f"v_and_b32 v{WF+2*e+1}, 0xffff0000, v{WTr+e}")
    k(f"v_max_f32 v5, |v{WF}|, |v{WF+1}|")
    for e in range(1, 8): k(f"v_max3_f32 v5, |v{WF+2*e}|, |v{WF+2*e+1}|, v5")
    for sh in (8, 4, 2, 1): k(f"v_max_f32_dpp v5, v5, v5 row_ror:{sh} row_mask:0xf bank_mask:0xf")
    k("s_lshl_b32 s37, s22, 4"); k("v_lshl_add_u32 v7, v2, 2, s37")
    k(f"ds_write_b32 v7, v5 offset:{EXC}")
    k("s_lshl_b32 s37, s22, 12"); k("v_add_u32 v5, s37, v1")
    k("s_lshl_b32 s37, s25, 13"); k("v_add_u32 v7, s37, v1")
    k("v_mov_b32 v6, 0")
    k("s_waitcnt lgkmcnt(0)"); k("s_barrier")
    stp("bar1")
    for st in range(2):
        for ri in range(2): k(f"ds_read_b128 {vr(T1+12*st+4*ri,4)}, v5 offset:{TAB+st*2048+ri*1024}")
    for ta in range(2):
        for st in range(2):
            for ri in range(2): k(f"ds_read_b128 {vr(DF+16*ta+8*st+4*ri,4)}, v1 offset:{DATA+(ta*2+st)*2048+ri*1024}")
    for q in range(4): k(f"ds_read_b128 {vr(AC2+4*q,4)}, v6 offset:{EXC+16*q}")
    for t in range(2):
        for ri in range(2): k(f"ds_read_b128 {vr(T32+12*t+4*ri,4)}, v1 offset:{TAB+16384+t*2048+ri*1024}")
    k("s_waitcnt lgkmcnt(12)")
    for st in range(2):
        for q in range(4): k(f"v_xor_b32 v{T1+12*st+8+q}, 0x80008000, v{T1+12*st+4+q}")
    def mf(d, a, b, first): k(f"v_mfma_f32_16x16x32_f16 {vr(d,4)}, {vr(a,4)}, {vr(b,4)}, {'0' if first else vr(d,4)}")
    for ta in range(2):
        if ta == 1: k("s_waitcnt lgkmcnt(8)")
        for st in range(2):
            xr = DF+16*ta+8*st; xi = xr+4; wr = T1+12*st; wi = wr+4; wn = wr+8
            mf(AC1+8*ta, xr, wr, st == 0); mf(AC1+8*ta+4, xr, wi, st == 0)
            mf(AC1+8*ta, xi, wn, False); mf(AC1+8*ta+4, xi, wr, False)
    k("s_waitcnt lgkmcnt(4)")
    k(f"v_max3_f32 v4, v{AC2}, v{AC2+1}, v{AC2+2}")
    for q in range(3, 15, 2): k(f"v_max3_f32 v4, v{AC2+q}, v{AC2+q+1}, v4")
    k(f"v_max_f32 v4, v{AC2+15}, v4")
    k("v_frexp_exp_i32_f32 v4, v4")
    k("v_max_i32 v4, -100, v4"); k("v_min_i32 v4, 100, v4")
    k("v_ldexp_f32 v6, 1.0, v4")
    k("v_sub_u32 v4, 0, v4"); k("v_ldexp_f32 v4, 1.0, v4")
    for e in range(8): k(f"v_pk_mul_f32 {vr(WF+2*e,2)}, {vr(WF+2*e,2)}, v[4:5] op_sel_hi:[1,0]")
    for t in range(2):
        for st in range(2):
            for ri in range(2): k(f"ds_read_b128 {vr(T4+24*t+12*st+4*ri,4)}, v7 offset:{TAB+t*4096+st*2048+ri*1024}")
    k("s_waitcnt lgkmcnt(8)")
    for t in range(2):
        for q in range(4): k(f"v_xor_b32 v{T32+12*t+8+q}, 0x80008000, v{T32+12*t+4+q}")
    def cmul(dr, di, e, xr, xi, c, s, conj, t0, t1):
        m = 'lo' if e % 2 == 0 else 'hi'
        k(f"v_mul_f32 v{t0}, v{xr}, v{c}"); k(f"v_mul_f32 v{t1}, v{xi}, v{c}")
        k(f"v_fma_mix{m}_f16 v{dr+e//2}, {'' if conj else '-'}v{xi}, v{s}, v{t0}")
        k(f"v_fma_mix{m}_f16 v{di+e//2}, {'-' if conj else ''}v{xr}, v{s}, v{t1}")
    TT = SS
    for e in range(8):
        ta, r = e >> 2, e & 3
        cmul(PB, PB+4, e, AC1+8*ta+r, AC1+8*ta+4+r, C1+e, S1+e, True, TT+2*(e % 4), TT+2*(e % 4)+1)
    for u in range(2):
        wr = T32+12*u; wi = wr+4; wn = wr+8
        mf(AC2+8*u, wr, PB, True); mf(AC2+8*u+4, wi, PB, True)
        mf(AC2+8*u, wn, PB+4, False); mf(AC2+8*u+4, wr, PB+4, False)
    k("s_waitcnt lgkmcnt(0)")
    for t in range(2):
        for st in range(2):
            for q in range(4): k(f"v_xor_b32 v{T4+24*t+12*st+8+q}, 0x80008000, v{T4+24*t+12*st+4+q}")
    PB2 = DF+16
    for e in range(8):
        u, r = e >> 2, e & 3
        cmul(PB2, PB2+4, e, AC2+8*u+r, AC2+8*u+4+r, WF+2*e, WF+2*e+1, False, TT+2*(e % 4), TT+2*(e % 4)+1)
    for ta in range(2):
        wr = T32+12*ta; wi = wr+4; wn = wr+8
        mf(AC1+8*ta, PB2, wr, True); mf(AC1+8*ta+4, PB2, wn, True)
        mf(AC1+8*ta, PB2+4, wi, False); mf(AC1+8*ta+4, PB2+4, wr, False)
    k("s_lshl_b32 s36, s25, 10"); k("s_lshl_b32 s37, s24, 3"); k("s_add_u32 s36, s36, s37")
    k("v_add_u32 v4, s36, v1")
    k("s_lshl_b32 s36, s24, 12"); k("v_add_u32 v5, s36, v1")
    stp("s3"); k("s_barrier")
    for e in range(8):
        ta, r = e >> 2, e & 3
        cmul(PB+2*ta, PB+4+2*ta, r, AC1+8*ta+r, AC1+8*ta+4+r, C2+e, S2+e, False, TT+2*(e % 4), TT+2*(e % 4)+1)
        if r == 3:
            k(f"ds_write_b64 v4, {vr(PB+2*ta,2)} offset:{EXC+ta*4096}")
            k(f"ds_write_b64 v4, {vr(PB+4+2*ta,2)} offset:{EXC+ta*4096+2048}")
    for ri, X in ((0, XR), (1, XI)):
        for q in range(4):
            k(f"v_lshlrev_b32 v{WF+8*ri+2*q}, 16, v{X+q}"); k(f"v_and_b32 v{WF+8*ri+2*q+1}, 0xffff0000, v{X+q}")
    k(f"s_cmp_eq_u32 s{sid}, 0"); k("s_cselect_b32 s36, 0, 1.0"); k("v_mul_f32 v7, s36, v6")
    k("s_waitcnt lgkmcnt(0)"); k("s_barrier")
    stp("bar3")
    for st in range(2):
        for ri in range(2): k(f"ds_read_b128 {vr(DF+8*st+4*ri,4)}, v5 offset:{EXC+ri*2048+st*1024}")
    for st in range(2):
        k(f"s_waitcnt lgkmcnt({2-2*st})")
        sr_, si = DF+8*st, DF+8*st+4
        for u in range(2):
            wr = T4+24*u+12*st; wi = wr+4; wn = wr+8
            mf(AC2+8*u, wr, sr_, st == 0); mf(AC2+8*u+4, wr, si, st == 0)
            mf(AC2+8*u, wi, si, False); mf(AC2+8*u+4, wn, sr_, False)
    for ri in range(2):
        for e in range(8):
            u, r = e >> 2, e & 3
            k(f"v_fmac_f32 v{WF+8*ri+e}, v{AC2+8*u+4*ri+r}, v{6+ri}")
        for q in range(4): k(f"v_cvt_pk_bf16_f32 v{PB+4*ri+q}, v{WF+8*ri+2*q}, v{WF+8*ri+2*q+1}")
        k(f"buffer_store_dwordx4 {vr(PB+4*ri,4)}, v1, s[12:15], s{30 if ri == 0 else 35} offen sc1")
    if zero_ssq2:
        lz = k.lab('z')
        k(f"s_cmp_ge_u32 s{sid}, 2"); k(f"s_cbranch_scc1 {lz}")
        for q in range(4): k(f"v_mov_b32 v{8+q}, 0")
        k("v_lshlrev_b32 v4, 4, v0")
        k(f"s_lshl_b32 s36, s{sid}, 12"); k(f"s_add_u32 s36, s36, {SSQ2}")
        k("buffer_store_dwordx4 v[8:11], v4, s[12:15], s36 offen")
        k(f"{lz}:")
    stp("st"); stp.flush()
    k("s_endpgm")

def wtpack(k, sid=2):
    k("s_load_dwordx4 s[4:7], s[0:1], 8")
    k("s_load_dwordx2 s[20:21], s[0:1], 64")
    k("v_lshrrev_b32 v1, 6, v0"); k("v_and_b32 v2, 63, v0")
    k("v_readfirstlane_b32 s22, v1")
    k(f"s_lshr_b32 s23, s{sid}, 4")
    k(f"s_bfe_u32 s24, s{sid}, 0x20002")
    k(f"s_and_b32 s25, s{sid}, 3")
    k("s_lshl_b32 s26, s23, 6"); k("v_add_u32 v3, s26, v2")
    k("v_cmp_eq_u32 vcc, 0, v3"); k("v_mov_b32 v5, 320"); k("v_cndmask_b32 v4, v3, v5, vcc"); k("v_lshlrev_b32 v4, 1, v4")
    k("v_lshlrev_b32 v3, 13, v3")
    k("s_lshl_b32 s26, s25, 8"); k("s_lshl_b32 s27, s24, 4"); k("s_add_u32 s26, s26, s27"); k("s_lshl_b32 s27, s22, 2"); k("s_add_u32 s26, s26, s27")
    k("s_mul_i32 s26, s26, 642")
    k("s_lshl_b32 s28, s24, 11"); k("s_lshl_b32 s27, s25, 9"); k("s_add_u32 s28, s28, s27"); k("s_lshl_b32 s27, s22, 7"); k("s_add_u32 s28, s28, s27")
    k(f"s_add_u32 s28, s28, {WT}")
    k("s_waitcnt lgkmcnt(0)")
    srd(k, 8, 4, 0, 2048*642); srd(k, 12, 6, 0, 2048*642); srd(k, 16, 20, 0, WS_END)
    for e in range(8):
        u, r = e >> 2, e & 3
        k(f"s_add_u32 s29, s26, {642*64*(16*u+r)}")
        for dl in range(4):
            k(f"buffer_load_ushort v{8+8*dl+e}, v4, s[8:11], s29 offen offset:{642*dl}")
            k(f"buffer_load_ushort v{40+8*dl+e}, v4, s[12:15], s29 offen offset:{642*dl}")
    for e in range(8):
        k(f"s_waitcnt vmcnt({56-8*e})")
        for dl in range(4): k(f"v_lshl_or_b32 v{8+8*dl+e}, v{40+8*dl+e}, 16, v{8+8*dl+e}")
    for q in range(8): k(f"buffer_store_dwordx4 {vr(8+4*q,4)}, v3, s[16:19], s28 offen offset:{16*q}")
    k("s_endpgm")
```

```python
import numpy as np
from asmlib import *
from layout import *
from gen import getpc, srd, n1_of_p, Stamper, pf_code
def f32hex(x): return hex(int(np.float32(x).view(np.uint32)))

class VM:
    def __init__(self): self.tags = []
    def issue(self, tag): self.tags.append(tag)
    def wait(self, pred):
        last = -1
        for i, t in enumerate(self.tags):
            if pred(t): last = i
        return len(self.tags) - 1 - last

EA_R = 4
EA_LDS = EA_R*20480
def engineA2(k, mode, sid=2, PD=2, hook=None, rotate=True):
    R = EA_R
    fin = mode == 'fin'
    NC = 10 if fin else 5
    aoff = {'p0': 0, 'p4': 64, 'wop': 40, 'fin': 48}[mode]
    stp = Stamper(k); stp("start")
    k(f"s_load_dwordx2 s[4:5], s[0:1], {aoff}")
    k(f"s_load_dwordx2 s[6:7], s[0:1], 64")
    if mode == 'p0':
        lp = k.lab('pf'); k(f"s_cmp_ge_u32 s{sid}, 16"); k(f"s_cbranch_scc1 {lp}")
        pf_code(k, 256, 44, 180, 181); k(f"{lp}:")
    if mode == 'wop':
        k(f"s_and_b32 s20, s{sid}, 7"); k("s_mul_i32 s20, s20, 10"); k(f"s_lshr_b32 s21, s{sid}, 3"); k("s_add_u32 s21, s21, s20")
        k("s_lshr_b32 s20, s21, 3"); k("s_and_b32 s21, s21, 7")
    else:
        k(f"s_and_b32 s24, s{sid}, 7"); k(f"s_bfe_u32 s25, s{sid}, 0x20003")
        k("s_lshl_b32 s20, s24, 2"); k("s_add_u32 s20, s20, s25"); k(f"s_lshr_b32 s21, s{sid}, 5")
    k("v_lshrrev_b32 v1, 6, v0"); k("v_and_b32 v2, 63, v0")
    k("v_readfirstlane_b32 s22, v1")
    k("v_and_b32 v3, 15, v0"); k("v_bfe_u32 v4, v0, 4, 2"); k("v_lshlrev_b32 v5, 4, v2")
    k("s_mul_i32 s24, s21, 102400"); k("s_mul_i32 s23, s22, 5120")
    k("s_add_u32 s37, s20, s21"); k("s_mul_i32 s38, s37, 205"); k("s_lshr_b32 s38, s38, 10"); k("s_mul_i32 s38, s38, 5"); k("s_sub_u32 s37, s37, s38")
    if not rotate: k("s_mov_b32 s37, 0")
    k("s_mov_b32 s38, s37")
    NA = PD+1
    VA = 16; VB = VA+16*NA; VD = VB+60; VG = VD+20; VS = VG+4; VONE = VS+4; VRES = VONE+4
    vm = VM()
    def rot(r, c): return [] if c % 5 == 0 and c < 5 else [f"s_add_u32 s{r}, s{r}, 1", f"s_cmp_eq_u32 s{r}, 5", f"s_cselect_b32 s{r}, 0, s{r}"]
    def dma(c):
        sw = "s[8:11]" if c < 5 else "s[32:35]"
        sl = c % R
        L = [rot(37, c) + ["s_mul_i32 s36, s37, 20480", "s_add_u32 s36, s36, s23", f"s_add_u32 m0, s23, {sl*20480}", f"buffer_load_dwordx4 v5, {sw}, s36 offen lds"]]
        for f in range(1, 4): L.append([f"buffer_load_dwordx4 v5, {sw}, s36 offen offset:{f*1024} lds"])
        L.append([f"s_add_u32 m0, s23, {sl*20480+4096}", f"s_add_u32 s36, s36, 4096", f"buffer_load_dwordx4 v5, {sw}, s36 offen lds"])
        return [((c, 'd'), l) for l in L]
    def aload(c):
        L = []
        for s in range(4*c, 4*c+4):
            d = vr(VA+16*(c % NA)+4*(s % 4), 4)
            if mode in ('p4', 'fin'):
                base = (AFX if s < 20 else AFO) if fin else AFO
                pre = []
                if s % 4 == 0: pre = rot(38, c) + ["s_lshl_b32 s27, s38, 13", f"s_add_u32 s27, s27, {base}"]
                if s % 4 == 2: pre = ["s_add_u32 s27, s27, 4096"]
                L.append(pre + [f"buffer_load_dwordx4 {d}, v7, s[12:15], s27 offen offset:{(s % 2)*2048}"])
            else:
                pre = rot(38, c) + ["s_lshl_b32 s27, s38, 8"] if s % 4 == 0 else []
                L.append(pre + [f"buffer_load_dwordx4 {d}, v7, s[12:15], s27 offen offset:{(s % 4)*64}"])
        return [((c, 'a'), l) for l in L]
    def emit(e):
        for x in e[1]: k(x)
        vm.issue(e[0])
    static_b = mode != 'p4'
    if static_b:
        getpc(k, 26, ".Ltab3" if fin else ".Ltab1")
        srd(k, 8, 26, "s24", 102400)
        for c in range(PD):
            for e in dma(c): emit(e)
    k("s_lshl_b32 s25, s20, 6"); k("s_lshl_b32 s26, s22, 4"); k("s_add_u32 s25, s25, s26")
    k("v_add_u32 v6, s25, v3")
    if mode == 'p0':
        n1_of_p(k, 7, 6, 8, 9)
        k("v_mul_u32_u24 v7, 1280, v7"); k("v_lshl_add_u32 v7, v4, 4, v7")
    elif mode in ('p4', 'fin'):
        k("v_lshrrev_b32 v7, 5, v6"); k("v_mul_u32_u24 v7, 40960, v7"); k("v_lshl_add_u32 v7, v4, 9, v7")
        k("v_and_b32 v8, 31, v6"); k("v_lshl_add_u32 v7, v8, 4, v7")
    else:
        k("v_lshrrev_b32 v8, 4, v6"); k("v_mul_u32_u24 v8, 20, v8")
        k("v_and_b32 v9, 3, v6"); k("v_add_u32 v8, v8, v9")
        k("v_bfe_u32 v10, v6, 3, 1"); k("v_lshl_add_u32 v8, v10, 2, v8")
        k("v_bfe_u32 v10, v6, 2, 1"); k("v_lshl_add_u32 v8, v10, 3, v8")
        k("v_subrev_u32 v10, 512, v6"); k("v_lshrrev_b32 v10, 2, v10")
        k("v_mul_u32_u24 v10, 20, v10"); k("v_add3_u32 v10, v10, v9, 16")
        k("v_cmp_gt_u32 vcc, 512, v6"); k("v_cndmask_b32 v7, v10, v8, vcc")
        k("v_mul_u32_u24 v7, 1280, v7"); k("v_lshl_add_u32 v7, v4, 4, v7")
    if mode in ('p0', 'wop'):
        for r in range(4): k(f"v_mov_b32 v{VONE+r}, 0x3f803f80")
    if fin:
        n1_of_p(k, 10, 6, 8, 9)
        k("v_mul_u32_u24 v10, 1280, v10"); k("v_lshl_add_u32 v12, v4, 3, v10"); k("v_lshl_add_u32 v10, v4, 4, v10")
        k("v_lshlrev_b32 v13, 2, v6")
    else:
        k("v_lshlrev_b32 v10, 12, v3"); k("v_lshl_add_u32 v10, v4, 3, v10")
    k("v_add_u32 v11, 0x10000, v5")
    k("s_waitcnt lgkmcnt(0)"); stp("karg")
    if mode in ('p4', 'fin'):
        srd(k, 12, 6, 0, WS_END)
        k(f"s_add_u32 s24, s24, {WOT if fin else WOP}")
        srd(k, 32 if fin else 8, 6, "s24", 102400)
        if fin:
            k(f"s_and_b32 s40, s{sid}, 7"); k("s_mul_i32 s40, s40, 327680"); k(f"s_lshr_b32 s41, s{sid}, 3"); k("s_mul_i32 s41, s41, 10240")
            k("s_add_u32 s40, s40, s41"); k(f"s_add_u32 s40, s40, {AFO}")
            k("v_lshlrev_b32 v180, 7, v0"); k("v_min_u32 v180, 10112, v180")
            emit((97, ["buffer_load_dword v181, v180, s[12:15], s40 offen"]))
    else:
        srd(k, 12, 4, 0, 2048*1280 if mode == 'p0' else 640*1280)
    for c in range(PD):
        if not static_b:
            for e in dma(c): emit(e)
        for e in aload(c): emit(e)
    k("s_mul_i32 s28, s21, 80*4096"); k("s_lshl_b32 s29, s25, 1"); k("s_add_u32 s28, s28, s29")
    extra = []
    if mode == 'p4':
        for jl in range(5):
            extra.append((99, [f"s_add_u32 s29, s28, {XB+jl*65536}", f"buffer_load_dwordx2 {vr(VRES+2*jl,2)}, v10, s[12:15], s29 offen"]))
    if fin:
        extra.append((99, [f"s_mov_b32 s29, {DC0}", f"buffer_load_dword v{VRES}, v13, s[12:15], s29 offen"]))
        extra.append((99, [f"s_mov_b32 s29, {DCD}", f"buffer_load_dword v{VRES+1}, v13, s[12:15], s29 offen"]))
    if hook: extra += [(98, h) for h in hook(k)]
    def breads(s):
        L = []
        for jl in range(5):
            o = ((s//4) % R)*20480+(s % 4)*5120+jl*1024
            L.append(f"ds_read_b128 {vr(VB+20*(s % 3)+4*jl,4)}, v{5 if o < 65536 else 11} offset:{o % 65536}")
        return L
    def nextloads(c):
        if c < NC: return dma(c) + aload(c)
        if c == NC: return extra
        return []
    stp("issued")
    k(f"s_waitcnt vmcnt({vm.wait(lambda t: t == (0, 'd'))})"); k("s_barrier"); stp("c0")
    for x in breads(0) + breads(1): k(x)
    pend = nextloads(PD)
    NS = 4*NC
    for s in range(NS):
        c, st = s // 4, s % 4
        nxt = breads(s+2) if s+2 < NS else []
        a = vr(VA+16*(c % NA)+4*st, 4)
        for jl in range(5):
            lg = 9 if nxt else (9 if s+2 == NS else 4) - jl
            vw = f"vmcnt({vm.wait(lambda t: t == (c, 'a'))}) " if (st, jl) == (0, 0) else ""
            k(f"s_waitcnt {vw}lgkmcnt({lg})")
            b = vr(VB+20*(s % 3)+4*jl, 4)
            x, y = (b, a) if fin else (a, b)
            k(f"v_mfma_f32_16x16x32_bf16 {vr(VD+4*jl,4)}, {x}, {y}, {'0' if s == 0 else vr(VD+4*jl,4)}")
            if jl == 0 and st == 2 and c+1 < NC:
                for e in pend: emit(e)
                k(f"s_waitcnt vmcnt({vm.wait(lambda t: t == (c+1, 'd'))})"); k("s_barrier")
                if c in (0, 1, 2, 3, 5, 7): stp(f"c{c+1}")
                pend = nextloads(c+1+PD)
            if nxt: k(nxt[jl])
            if pend and (jl in (1, 3, 4) or s < 2): emit(pend.pop(0))
        if mode == 'p0': k(f"v_mfma_f32_16x16x32_bf16 {vr(VG,4)}, {a}, {a}, {'0' if s == 0 else vr(VG,4)}")
        if mode in ('p0', 'wop'): k(f"v_mfma_f32_16x16x32_bf16 {vr(VS,4)}, {a}, {vr(VONE,4)}, {'0' if s == 0 else vr(VS,4)}")
    for e in pend: emit(e)
    stp("loop")
    T = VA
    lend = k.lab('end')
    if fin:
        srd(k, 16, 4, 0, 2048*1280)
        k("s_mul_i32 s28, s21, 160")
        k("s_waitcnt vmcnt(0)")
        k(f"v_add_f32 v{VRES}, v{VRES}, v{VRES+1}")
        for r in range(20): k(f"v_add_f32 v{VD+r}, v{VD+r}, v{VRES}")
        for q in range(10): k(f"v_cvt_pk_bf16_f32 v{T+q}, v{VD+2*q}, v{VD+2*q+1}")
        k(f"buffer_store_dwordx4 {vr(T,4)}, v10, s[16:19], s28 offen")
        k(f"buffer_store_dwordx4 {vr(T+4,4)}, v10, s[16:19], s28 offen offset:64")
        k(f"buffer_store_dwordx2 {vr(T+8,2)}, v12, s[16:19], s28 offen offset:128")
    elif mode == 'p0':
        srd(k, 16, 6, XA, 0x280000)
        for jl in range(5):
            k(f"v_cvt_pk_bf16_f32 v{T+2*jl}, v{VD+4*jl}, v{VD+4*jl+1}")
            k(f"v_cvt_pk_bf16_f32 v{T+2*jl+1}, v{VD+4*jl+2}, v{VD+4*jl+3}")
            k(f"s_add_u32 s29, s28, {jl*65536}")
            k(f"buffer_store_dwordx2 {vr(T+2*jl,2)}, v10, s[16:19], s29 offen")
        k("s_cmp_lg_u32 s21, 0"); k(f"s_cbranch_scc1 {lend}")
        k("v_and_b32 v12, 3, v3")
        for r in range(1, 4):
            k(f"v_cmp_eq_u32 vcc, {r}, v12")
            k(f"v_cndmask_b32 v{VG}, v{VG}, v{VG+r}, vcc")
            k(f"v_cndmask_b32 v{VS}, v{VS}, v{VS+r}, vcc")
        k(f"v_mul_f32 v13, {f32hex(1/640)}, v{VS}")
        k(f"v_fma_f32 v14, -v13, v{VS}, v{VG}")
        k("v_max_f32 v14, 0, v14")
        k("v_lshrrev_b32 v12, 2, v3")
        k("v_cmp_eq_u32 vcc, v12, v4")
        k("v_lshlrev_b32 v15, 2, v6")
        srd(k, 16, 6, SSQ0, 0x8000)
        k("s_mov_b64 exec, vcc")
        k("buffer_store_dword v14, v15, s[16:19], 0 offen")
        k(f"s_movk_i32 s29, {DC0-SSQ0}")
        k("buffer_store_dword v13, v15, s[16:19], s29 offen")
    elif mode == 'wop':
        k("s_lshr_b32 s29, s25, 5"); k("s_mul_i32 s29, s29, 5120"); k("s_add_u32 s29, s29, s24")
        k("s_and_b32 s30, s22, 1"); k("s_lshl_b32 s30, s30, 9"); k("s_add_u32 s29, s29, s30")
        k("v_lshrrev_b32 v12, 1, v4"); k("v_lshlrev_b32 v12, 8, v12"); k("v_lshl_add_u32 v12, v3, 4, v12")
        k("v_and_b32 v13, 1, v4"); k("v_lshl_add_u32 v12, v13, 3, v12")
        srd(k, 16, 6, WOP, 819200)
        k("s_cmp_eq_u32 s21, 0"); k("s_cselect_b32 s30, 1, 99")
        k("v_cmp_eq_u32 vcc, s30, v3")
        for r in range(4):
            k(f"v_mul_f32 v{VS+r}, {f32hex(1/640)}, v{VS+r}")
            k(f"v_cndmask_b32 v{VD+r}, v{VD+r}, v{VS+r}, vcc")
        for jl in range(5):
            k(f"v_cvt_pk_bf16_f32 v{T+2*jl}, v{VD+4*jl}, v{VD+4*jl+1}")
            k(f"v_cvt_pk_bf16_f32 v{T+2*jl+1}, v{VD+4*jl+2}, v{VD+4*jl+3}")
            if jl == 4: k("s_add_u32 s29, s29, 4096")
            k(f"buffer_store_dwordx2 {vr(T+2*jl,2)}, v12, s[16:19], s29 offen offset:{(jl % 4)*1024}")
    else:
        k("s_waitcnt vmcnt(0)")
        k("s_cmp_eq_u32 s21, 0"); k("s_cselect_b32 s30, 1, 99")
        k("v_cmp_eq_u32 vcc, s30, v3")
        k("v_lshlrev_b32 v15, 4, v4"); k("s_lshl_b32 s31, s25, 2"); k(f"s_add_u32 s31, s31, {DCD}")
        lsk = k.lab('sk')
        k("s_cmp_lg_u32 s21, 0"); k(f"s_cbranch_scc1 {lsk}")
        k("s_mov_b64 exec, vcc")
        k(f"buffer_store_dwordx4 {vr(VD,4)}, v15, s[12:15], s31 offen")
        k("s_mov_b64 exec, -1")
        k(f"{lsk}:")
        for r in range(4): k(f"v_cndmask_b32 v{VD+r}, v{VD+r}, 0, vcc")
        for jl in range(5):
            for h in range(2):
                k(f"v_lshlrev_b32 v{T}, 16, v{VRES+2*jl+h}"); k(f"v_and_b32 v{T+1}, 0xffff0000, v{VRES+2*jl+h}")
                k(f"v_add_f32 v{VD+4*jl+2*h}, v{VD+4*jl+2*h}, v{T}"); k(f"v_add_f32 v{VD+4*jl+2*h+1}, v{VD+4*jl+2*h+1}, v{T+1}")
            k(f"v_cvt_pk_bf16_f32 v{T+4+2*jl}, v{VD+4*jl}, v{VD+4*jl+1}")
            k(f"v_cvt_pk_bf16_f32 v{T+4+2*jl+1}, v{VD+4*jl+2}, v{VD+4*jl+3}")
            k(f"s_add_u32 s29, s28, {XA+jl*65536}")
            k(f"buffer_store_dwordx2 {vr(T+4+2*jl,2)}, v10, s[12:15], s29 offen")
        for r in range(4): k(f"v_mul_f32 v{VG+r}, v{VD+r}, v{VD+r}")
        for jl in range(1, 5):
            for r in range(4): k(f"v_fmac_f32 v{VG+r}, v{VD+4*jl+r}, v{VD+4*jl+r}")
        for sh in (8, 4, 2, 1):
            for r in range(4): k(f"v_add_f32_dpp v{VG+r}, v{VG+r}, v{VG+r} row_ror:{sh} row_mask:0xf bank_mask:0xf")
        for r in range(1, 4):
            k(f"v_cmp_eq_u32 vcc, {r}, v3")
            k(f"v_cndmask_b32 v{VG}, v{VG}, v{VG+r}, vcc")
        k("v_cmp_gt_u32 vcc, 4, v3")
        k("v_lshl_add_u32 v15, v3, 2, v15")
        k("s_lshl_b32 s31, s25, 2"); k(f"s_add_u32 s31, s31, {SSQ2}")
        k("s_mov_b64 exec, vcc")
        k(f"buffer_atomic_add_f32 v{VG}, v15, s[12:15], s31 offen")
    k(f"{lend}:")
    stp("st"); stp.flush()
    k("s_endpgm")

def wotpack(k, sid=2):
    k("s_load_dwordx2 s[4:5], s[0:1], 40")
    k("s_load_dwordx2 s[6:7], s[0:1], 64")
    k("v_lshrrev_b32 v1, 6, v0"); k("v_and_b32 v2, 63, v0")
    k("v_readfirstlane_b32 s22, v1")
    k(f"s_lshl_b32 s20, s{sid}, 2"); k("s_add_u32 s20, s20, s22")
    k("s_mul_i32 s21, s20, 3277"); k("s_lshr_b32 s21, s21, 16")
    k("s_mul_i32 s23, s21, 20"); k("s_sub_u32 s23, s20, s23")
    k("s_mul_i32 s24, s23, 40"); k("s_mul_i32 s25, s23, 160"); k(f"s_sub_u32 s25, s25, {160*16-16}")
    k("s_cmp_lt_u32 s23, 16")
    k("s_cselect_b32 s24, s24, s25"); k("s_cselect_b32 s26, 20, 80"); k("s_cselect_b32 s27, 4, 40"); k("s_cselect_b32 s28, 8, 20")
    k("s_mul_i32 s24, s24, 1280"); k("s_mul_i32 s25, s21, 160"); k("s_add_u32 s24, s24, s25"); k("s_mul_i32 s28, s28, 1280")
    k("v_and_b32 v3, 15, v2"); k("v_lshrrev_b32 v4, 5, v2"); k("v_bfe_u32 v5, v2, 4, 1")
    k("v_mul_lo_u32 v4, v4, s26"); k("v_mul_lo_u32 v5, v5, s27"); k("v_add_u32 v4, v4, v5"); k("v_mul_u32_u24 v4, 1280, v4")
    k("v_lshl_add_u32 v6, v3, 1, v4")
    k("v_lshrrev_b32 v5, 2, v3"); k("v_lshl_add_u32 v4, v5, 4, v4"); k("v_and_b32 v5, 3, v3"); k("v_lshl_add_u32 v4, v5, 1, v4")
    k("v_lshlrev_b32 v7, 4, v2")
    k("s_mul_i32 s30, s20, 5120"); k(f"s_add_u32 s30, s30, {WOT}")
    k("s_waitcnt lgkmcnt(0)")
    srd(k, 8, 4, 0, 640*1280); srd(k, 12, 6, 0, WS_END)
    for e in range(8):
        if e == 4: k("s_add_u32 s24, s24, s28")
        k(f"s_add_u32 s29, s24, {(e & 3)*1280}")
        for jl in range(5):
            off = 128 if jl == 4 else 64*(jl >> 1) + 8*(jl & 1)
            k(f"buffer_load_ushort v{8+8*jl+e}, v{6 if jl == 4 else 4}, s[8:11], s29 offen offset:{off}")
    for q in range(4):
        k(f"s_waitcnt vmcnt({30-10*q})")
        for jl in range(5): k(f"v_lshl_or_b32 v{48+4*jl+q}, v{8+8*jl+2*q+1}, 16, v{8+8*jl+2*q}")
    for jl in range(5):
        if jl == 4: k("s_add_u32 s30, s30, 4096")
        k(f"buffer_store_dwordx4 {vr(48+4*jl,4)}, v7, s[12:15], s30 offen offset:{(jl % 4)*1024}")
    k("s_endpgm")
```

```python
import numpy as np
from asmlib import *
from layout import *
from gen import getpc, srd, Stamper
from ea import VM
def f32hex(x): return hex(int(np.float32(x).view(np.uint32)))
EB_R, EB_PD = 4, 2
EB_LDS = EB_R*16384 + 512
CS = Dh**-0.5 * np.log2(np.e)

def div20(k, vq, vr_, vx):
    k(f"v_mul_u32_u24 v{vq}, 3277, v{vx}"); k(f"v_lshrrev_b32 v{vq}, 16, v{vq}")
    k(f"v_mul_u32_u24 v{vr_}, 20, v{vq}"); k(f"v_sub_u32 v{vr_}, v{vx}, v{vr_}")

def engineB(k, mode, sid=2, afx=False, xin=XB, hook=None):
    R, PD = EB_R, EB_PD
    RS = R*16384
    gp = mode == 'gp'
    stride = 3840 if gp else 4096
    VDMA = 8
    VTR = 12
    VW = 20
    VSS = 24
    FR = 32
    AC = 80
    WR = 144
    RV = 192
    stp = Stamper(k); stp("start")
    k("s_load_dwordx2 s[4:5], s[0:1], 64")
    if gp: k("s_load_dwordx2 s[6:7], s[0:1], 32")
    k("v_lshrrev_b32 v1, 6, v0"); k("v_and_b32 v2, 63, v0")
    k("v_readfirstlane_b32 s22, v1")
    if gp:
        k(f"s_and_b32 s20, s{sid}, 7"); k("s_lshl_b32 s20, s20, 1"); k(f"s_bfe_u32 s21, s{sid}, 0x10003"); k("s_add_u32 s20, s20, s21")
        k(f"s_lshr_b32 s21, s{sid}, 4")
        lgo = k.lab('go'); k("s_cmp_lt_u32 s20, 15"); k(f"s_cbranch_scc1 {lgo}"); k("s_endpgm"); k(f"{lgo}:")
    else:
        k(f"s_bfe_u32 s20, s{sid}, 0x20001"); k("s_lshl_b32 s20, s20, 2"); k(f"s_bfe_u32 s21, s{sid}, 0x20003"); k("s_add_u32 s20, s20, s21")
        k(f"s_and_b32 s21, s{sid}, 1"); k("s_lshl_b32 s21, s21, 3"); k(f"s_lshr_b32 s23, s{sid}, 5"); k("s_add_u32 s21, s21, s23")
    k("s_lshl_b32 s23, s21, 2"); k("s_add_u32 s23, s23, s22")
    k("v_lshlrev_b32 v3, 4, v2")
    k("v_lshrrev_b32 v4, 4, v2")
    k("v_and_b32 v5, 15, v2")
    k("v_lshlrev_b32 v6, 2, v4"); k("v_xor_b32 v6, v6, v5"); k("v_lshlrev_b32 v6, 4, v6")
    k(f"v_mul_u32_u24 v7, {stride}, v4"); k(f"v_add_u32 v{VDMA}, v6, v7")
    for q in range(1, 4): k(f"v_add_u32 v{VDMA+q}, {4*stride-1024}, v{VDMA+q-1}")
    k("v_lshrrev_b32 v6, 2, v5")
    k("v_lshrrev_b32 v7, 5, v2")
    k(f"v_lshl_add_u32 v1, v7, {3 if gp else 2}, v6"); k("v_lshlrev_b32 v1, 8, v1")
    k("v_and_b32 v21, 3, v5"); k("v_lshl_add_u32 v1, v21, 3, v1")
    k("v_and_b32 v21, 1, v4"); k("v_lshl_add_u32 v1, v21, 5, v1")
    for t in range(4):
        k(f"s_add_u32 s24, s22, {t}"); k("s_and_b32 s24, s24, 3"); k(f"s_mov_b32 s{40+t}, s24")
        k(f"v_xor_b32 v21, s24, v6"); k(f"v_lshl_add_u32 v{VTR+t}, v21, 6, v1")
    second = 1024 if gp else 2048
    if gp:
        k("v_and_b32 v21, 31, v2"); k("s_lshl_b32 s24, s23, 5"); k("v_add_u32 v21, s24, v21")
        k("v_lshrrev_b32 v21, 4, v21")
        k("v_mul_u32_u24 v22, 205, v21"); k("v_lshrrev_b32 v22, 10, v22")
        k("v_mul_u32_u24 v23, 5, v22"); k("v_sub_u32 v23, v21, v23")
        k(f"v_mul_u32_u24 v{VW}, 102400, v22"); k(f"v_lshl_add_u32 v{VW}, v23, 10, v{VW}")
        k(f"v_lshl_add_u32 v{VW}, v7, 8, v{VW}"); k(f"v_lshl_add_u32 v{VW}, v5, 4, v{VW}")
        getpc(k, 26, ".Ltab1")
        srd(k, 12, 26, 0, 819200)
        k("s_mov_b32 s25, 0")
    else:
        k(f"v_mov_b32 v{VW}, v3")
        k("s_mul_i32 s25, s23, 40960"); k(f"s_add_u32 s25, s25, {GP}")
    for r in range(8): k(f"v_mov_b32 v{VSS+r}, 0")
    k("s_lshl_b32 s24, s20, 8"); k(f"s_mul_i32 s26, s22, {16*stride}"); k("s_add_u32 s24, s24, s26")
    if not gp: k(f"s_add_u32 s24, s24, {xin}")
    k("s_lshl_b32 s26, s22, 12")
    k("s_add_u32 s45, s20, s21"); k("s_mul_i32 s46, s45, 205"); k("s_lshr_b32 s46, s46, 10"); k("s_mul_i32 s46, s46, 5"); k("s_sub_u32 s45, s45, s46")
    k("s_lshl_b32 s45, s45, 1")
    if not gp: k("s_mov_b32 s45, 0")
    k("s_waitcnt lgkmcnt(0)")
    stp("karg")
    srd(k, 16, 4, 0, WS_END)
    if gp: srd(k, 8, 6, 0, 640*3840)
    SA = "s[8:11]" if gp else "s[16:19]"
    SW = "s[12:15]" if gp else "s[16:19]"
    def loads(c):
        L = []
        pre = [] if c == 0 else ["s_add_u32 s45, s45, 1", "s_cmp_eq_u32 s45, 10", "s_cselect_b32 s45, 0, s45"]
        pre += [f"s_mul_i32 s27, s45, {64*stride}", "s_add_u32 s27, s27, s24", f"s_mul_i32 s28, s45, {10240 if gp else 4096}", "s_add_u32 s28, s28, s25"]
        L.append(pre + [f"s_add_u32 m0, s26, {(c % R)*16384}", f"buffer_load_dwordx4 v{VDMA}, {SA}, s27 offen lds"])
        for q in range(1, 4): L.append([f"buffer_load_dwordx4 v{VDMA+q}, {SA}, s27 offen offset:{q*1024} lds"])
        for st in range(4):
            pre = []
            if gp:
                if st == 2: pre = ["s_add_u32 s28, s28, 5120"]
                off = (st % 2)*512
            else:
                off = st*1024
            L.append(pre + [f"buffer_load_dwordx4 {vr(WR+16*(c % (PD+1))+4*st,4)}, v{VW}, {SW}, s28 offen offset:{off}"])
        return L
    def reads(s, b=None):
        c, st = s // 4, s % 4
        o = (c % R)*16384 + st*4096
        if b is None: b = s % 3
        return [f"ds_read_b64_tr_b16 {vr(FR+16*b+4*t+2*h,2)}, v{VTR+t} offset:{o + h*second}" for t in range(4) for h in range(2)]
    if afx:
        lt = k.lab('notr'); k("s_cmp_lg_u32 s21, 15"); k(f"s_cbranch_scc1 {lt}")
        for t in range(4):
            k(f"s_lshl_b32 s29, s20, 2"); k(f"s_add_u32 s29, s29, s{40+t}"); k("s_mul_i32 s29, s29, 40960")
            k("s_lshl_b32 s30, s22, 10"); k("s_add_u32 s29, s29, s30"); k(f"s_add_u32 s{48+t}, s29, {AFX}")
            k(f"v_add_u32 v{VTR+t}, s26, v{VTR+t}")
        vm = VM(); k("s_mov_b32 s45, 0")
        def dm(c):
            for l in loads(c)[:4]:
                for x in l: k(x)
                vm.issue(c)
        for c in range(R): dm(c)
        for c in range(10):
            k(f"s_waitcnt vmcnt({vm.wait(lambda t: t == c)})")
            for x in reads(4*c, c): k(x)
            if c+R < 10:
                k("s_waitcnt lgkmcnt(0)"); dm(c+R)
        for c in range(10):
            if c >= 10-R: k(f"s_waitcnt lgkmcnt({min(15, 8*(9-c))})")
            for t in range(4):
                k(f"buffer_store_dwordx4 {vr(FR+16*c+4*t,4)}, v3, s[16:19], s{48+t} offen sc1")
                k(f"s_add_u32 s{48+t}, s{48+t}, 4096")
        k("s_endpgm")
        k(f"{lt}:")
    vm0 = VM()
    def tagged(c): return [((c, 'd' if n < 4 else 'w'), l) for n, l in enumerate(loads(c))]
    for c in range(PD):
        for tg, l in tagged(c):
            for x in l: k(x)
            vm0.issue(tg)
    def rstd_pieces(swap):
        P = {}
        P[(38, 0)] = [f"v_add_f32 v{VSS+r}, v{VSS+r}, v{VSS+4+r}" for r in range(4)] + \
            [x for r in range(1, 4) for x in (f"v_cmp_eq_u32 vcc, {r}, v23", f"v_cndmask_b32 v{VSS}, v{VSS}, v{VSS+r}, vcc")]
        P[(38, 1)] = [f"v_mov_b32 v{VSS+1}, v{VSS}", f"v_permlane32_swap_b32 v{VSS}, v{VSS+1}", f"v_add_f32 v{VSS}, v{VSS}, v{VSS+1}",
                      f"v_mov_b32 v{VSS+1}, {f32hex(1e-5)}", f"v_fmamk_f32 v{VSS}, v{VSS}, {f32hex(1/640)}, v{VSS+1}", f"v_rsq_f32 v{VSS}, v{VSS}"]
        P[(38, 2)] = [f"ds_write_b32 v22, v{VSS}"]
        P[(38, 3)] = ["s_waitcnt vmcnt(0) lgkmcnt(0)", "s_barrier"]
        if swap:
            for t in range(4): P[(39, t)] = [f"ds_read_b128 {vr(RV+16*t+4*j,4)}, v{8+t} offset:{32*j}" for j in range(4)]
        else:
            P[(39, 0)] = [f"ds_read_b32 v{RV+2*t}, v{8+t}" for t in range(4)]
        return P
    def mainloop(swap):
        vm = VM(); vm.tags = list(vm0.tags)
        stp.n = 2; stp.names = stp.names[:2]; stp("issued")
        k(f"s_waitcnt vmcnt({vm.wait(lambda t: t == (0, 'd'))})"); k("s_barrier"); stp("c0")
        for x in reads(0) + reads(1): k(x)
        pend = tagged(PD); slots = 4
        P = {} if gp else rstd_pieces(swap)
        def ssq(s, h):
            f2 = vr(FR+16*(s % 3)+2*h, 2)
            k(f"v_mfma_f32_4x4x4_16b_bf16 {vr(VSS+4*h,4)}, {f2}, {f2}, {vr(VSS+4*h,4)}")
        for s in range(40):
            c, st = s // 4, s % 4
            nxt = reads(s+2) if s+2 < 40 else []
            w = vr(WR+16*(c % (PD+1))+4*st, 4)
            for t in range(4):
                if nxt: lg = 14
                elif gp: lg = (14 if s == 38 else 6) - 2*t
                else: lg = 6 if (s, t) == (38, 0) else None
                vw = f"vmcnt({vm.wait(lambda tg: tg == (c, 'w'))}) " if (st, t) == (0, 0) else ""
                if lg is not None or vw: k(f"s_waitcnt {vw}" + (f"lgkmcnt({lg})" if lg is not None else ""))
                if not gp and (s, t) == (38, 0):
                    for s2 in (38, 39):
                        for h in range(2): ssq(s2, h)
                f = vr(FR+16*(s % 3)+4*t, 4)
                a, b = (f, w) if swap else (w, f)
                k(f"v_mfma_f32_32x32x16_bf16 {vr(AC+16*t,16)}, {a}, {b}, {'0' if s == 0 else vr(AC+16*t,16)}")
                if t == 0 and st == 2 and nxt:
                    assert not pend
                    k(f"s_waitcnt vmcnt({vm.wait(lambda tg: tg == (c+1, 'd'))})"); k("s_barrier")
                    if c in (0, 1, 3, 5, 7): stp(f"c{c+1}")
                    if c+1+PD < 10: pend = tagged(c+1+PD)
                    elif c+1+PD == 10:
                        if hook: pend = [(99, h) for h in hook(k)]
                        if not gp:
                            for tt in range(4):
                                k(f"s_lshl_b32 s27, s{40+tt}, 7"); k(f"s_add_u32 s27, s27, {RS}")
                                k(f"v_lshl_add_u32 v{8+tt}, v7, 4, s27" if swap else f"v_add_u32 v{8+tt}, s27, v21")
                    slots = 8
                for x in nxt[2*t:2*t+2]: k(x)
                if not gp and t in (0, 2) and s < 38: ssq(s, t//2)
                for x in P.get((s, t), []): k(x)
                if t % 2 == 1:
                    for _ in range(-(-len(pend)//slots) if pend else 0):
                        tg, l = pend.pop(0)
                        for x in l: k(x)
                        vm.issue(tg)
                    slots -= 1
        stp("loop")
    T = FR+16
    if gp:
        mainloop(False)
        k("s_cmp_lt_u32 s20, 5"); k(f"s_cselect_b32 s30, {f32hex(CS)}, 1.0")
        k("s_cmp_lt_u32 s20, 10"); k("s_cselect_b32 s31, 1, 0")
        k("s_mul_i32 s32, s20, 205"); k("s_lshr_b32 s32, s32, 10")
        k("s_mul_i32 s33, s32, 5"); k("s_sub_u32 s33, s20, s33"); k("s_lshl_b32 s33, s33, 7")
        k("s_mul_i32 s32, s32, 20*40960"); k("s_lshl_b32 s34, s23, 11"); k("s_add_u32 s32, s32, s34"); k(f"s_add_u32 s32, s32, {GP}")
        k("v_and_b32 v1, 31, v2")
        for t in range(4):
            k(f"s_lshl_b32 s34, s{40+t}, 5"); k("s_add_u32 s34, s34, s33")
            k("v_add_u32 v8, s34, v1")
            div20(k, 9, 10, 8)
            k("v_lshrrev_b32 v11, 1, v9"); k("v_and_b32 v12, 1, v9"); k("v_lshl_add_u32 v12, v12, 4, v10")
            k("v_lshrrev_b32 v13, 3, v9"); k("v_add_u32 v13, 16, v13"); k("v_and_b32 v14, 7, v9"); k("v_lshl_add_u32 v14, v14, 2, v10"); k("v_subrev_u32 v14, 16, v14")
            k("v_cmp_gt_u32 vcc, 16, v10")
            k("v_cndmask_b32 v11, v13, v11, vcc"); k("v_cndmask_b32 v12, v14, v12, vcc")
            k("v_lshrrev_b32 v13, 5, v8")
            k("v_cmp_eq_u32 vcc, 1, s31")
            k("v_cndmask_b32 v11, v13, v11, vcc"); k("v_cndmask_b32 v12, v1, v12, vcc")
            k("v_mul_u32_u24 v11, 40960, v11"); k("v_lshl_add_u32 v11, v12, 4, v11"); k(f"v_lshl_add_u32 v{16+t}, v7, 9, v11")
        for t in range(4):
            for r in range(16): k(f"v_mul_f32 v{AC+16*t+r}, s30, v{AC+16*t+r}")
            for q in range(8): k(f"v_cvt_pk_bf16_f32 v{T+8*t+q}, v{AC+16*t+2*q}, v{AC+16*t+2*q+1}")
            k(f"buffer_store_dwordx4 {vr(T+8*t,4)}, v{16+t}, s[16:19], s32 offen")
            k(f"buffer_store_dwordx4 {vr(T+8*t+4,4)}, v{16+t}, s[16:19], s32 offen offset:1024")
        stp("st"); stp.flush(); stp.n -= Stamper.on; k("s_endpgm")
        return
    k("v_and_b32 v23, 3, v2")
    k("v_and_b32 v21, 31, v2"); k("v_lshlrev_b32 v21, 2, v21")
    k("s_lshl_b32 s27, s22, 7"); k(f"s_add_u32 s27, s27, {RS}"); k("v_add_u32 v22, s27, v21")
    def tile_offs():
        for t in range(4):
            k(f"s_lshl_b32 s36, s20, 1"); k(f"s_lshr_b32 s37, s{40+t}, 1"); k("s_add_u32 s36, s36, s37"); k("s_mul_i32 s36, s36, s35")
            k(f"s_and_b32 s37, s{40+t}, 1"); k(f"s_mul_i32 s37, s37, s34"); k("s_add_u32 s36, s36, s37"); k(f"s_add_u32 s{48+t}, s36, s33")
    lv = k.lab('v')
    k("s_cmp_ge_u32 s21, 10"); k(f"s_cbranch_scc1 {lv}")
    k("s_cmp_ge_u32 s21, 5"); k("s_cselect_b32 s30, 1, 0")
    k("s_mul_i32 s31, s30, 20"); k("s_sub_u32 s31, s23, s31")
    k("s_lshl_b32 s38, s31, 1"); k("s_sub_u32 s39, s31, 16"); k("s_lshl_b32 s39, s39, 3")
    k("s_cmp_ge_u32 s31, 16")
    k("s_cselect_b32 s38, s39, s38")
    k("s_mov_b32 s32, 65536"); k("s_cselect_b32 s32, 16384, s32")
    k(f"s_mov_b32 s33, {Q16}"); k(f"s_cselect_b32 s33, {Q4}, s33")
    k("s_movk_i32 s35, 2048"); k("s_cselect_b32 s35, 512, s35")
    k("s_movk_i32 s34, 1024"); k("s_cselect_b32 s34, 256, s34")
    k(f"s_mov_b32 s39, {KV}"); k(f"s_cselect_b32 s39, {KV+2048}, s39")
    k("s_cmp_eq_u32 s30, 1"); k("s_cselect_b32 s32, 163840, s32"); k(f"s_cselect_b32 s33, s39, s33"); k("s_cselect_b32 s35, 5120, s35")
    k("s_mul_i32 s38, s38, s32"); k("s_add_u32 s33, s33, s38")
    tile_offs()
    k("v_mul_lo_u32 v16, v7, s32"); k("v_lshl_add_u32 v16, v21, 1, v16")
    mainloop(False)
    def scale_pack(t):
        if t == 0: k(f"s_waitcnt lgkmcnt(0)")
        for r in range(0, 16, 2): k(f"v_pk_mul_f32 {vr(AC+16*t+r,2)}, {vr(AC+16*t+r,2)}, {vr(RV+2*t,2)} op_sel_hi:[1,0]")
        for q in range(8): k(f"v_cvt_pk_bf16_f32 v{T+8*t+q}, v{AC+16*t+2*q}, v{AC+16*t+2*q+1}")
    l4 = k.lab('four')
    k("s_cmp_ge_u32 s31, 16"); k(f"s_cbranch_scc1 {l4}")
    for t in range(4):
        scale_pack(t)
        k(f"buffer_store_dwordx4 {vr(T+8*t,4)}, v3, s[16:19], s{48+t} offen sc1")
        k(f"s_add_u32 s36, s{48+t}, s32")
        k(f"buffer_store_dwordx4 {vr(T+8*t+4,4)}, v3, s[16:19], s36 offen sc1")
    stp("st"); stp.flush(); stp.n -= Stamper.on; k("s_endpgm")
    k(f"{l4}:")
    k("s_lshl_b32 s32, s32, 1")
    for t in range(4):
        scale_pack(t)
        for j in range(4):
            k(f"buffer_store_dwordx2 {vr(T+8*t+2*j,2)}, v16, s[16:19], s{48+t} offen sc1")
            if j < 3: k(f"s_add_u32 s{48+t}, s{48+t}, s32")
    stp("st"); stp.flush(); stp.n -= Stamper.on; k("s_endpgm")
    k(f"{lv}:")
    k("s_sub_u32 s31, s23, 40"); k("s_lshl_b32 s31, s31, 5")
    k("v_and_b32 v16, 31, v2"); k("v_add_u32 v16, s31, v16")
    div20(k, 17, 18, 16)
    k("v_mul_u32_u24 v17, 163840, v17"); k("v_mad_u32_u24 v18, v7, 20, v18"); k("v_lshl_add_u32 v16, v18, 4, v17")
    k(f"s_mov_b32 s33, {KV+2560}"); k("s_movk_i32 s35, 5120"); k("s_movk_i32 s34, 1280")
    tile_offs()
    mainloop(True)
    for t in range(4):
        k(f"s_waitcnt lgkmcnt({12-4*t})")
        for r in range(0, 16, 2): k(f"v_pk_mul_f32 {vr(AC+16*t+r,2)}, {vr(AC+16*t+r,2)}, {vr(RV+16*t+r,2)}")
        for q in range(8): k(f"v_cvt_pk_bf16_f32 v{T+8*t+q}, v{AC+16*t+2*q}, v{AC+16*t+2*q+1}")
        k(f"buffer_store_dwordx4 {vr(T+8*t,4)}, v16, s[16:19], s{48+t} offen sc1")
        k(f"buffer_store_dwordx4 {vr(T+8*t+4,4)}, v16, s[16:19], s{48+t} offen offset:640 sc1")
    stp("st"); stp.flush(); stp.n -= Stamper.on; k("s_endpgm")
```

```python
import sys, numpy as np
from asmlib import *
from layout import *

NAME = "interleave_layers__spectral_gfnet__softmax_full_mha__prompt"

def tables():
    L = ['.altmacro']
    ct = np.sqrt(2/D)*np.cos(2*np.pi*np.arange(D)/D); ct[160] = 0; ct[480] = 0
    vals = list(bf16bits(ct)) + list(bf16bits(np.array([1/np.sqrt(D), -1/np.sqrt(D), 0.0])))
    for i, v in enumerate(vals): L.append(f".set .Lzq{i}, {int(v)}")
    L.append(r"""
.macro zze1 zza
.short .Lzq\zza
.endm
.macro zzf zzn, zzj
.if \zzj >= 2
zze1 %(((\zzj/2)*\zzn + (\zzj%2)*160)%640)
.elseif \zzj == 0
zze1 %(640 + (\zzn%2))
.else
zze1 642
.endif
.endm
.macro zze8 zza,zzb,zzc,zzd,zze,zzf,zzg,zzh
.short .Lzq\zza,.Lzq\zzb,.Lzq\zzc,.Lzq\zzd,.Lzq\zze,.Lzq\zzf,.Lzq\zzg,.Lzq\zzh
.endm
.macro zzg1 zzk, zzp, zzn, zzj
.if \zzj >= 2
zze8 %((\zzk*(\zzn)+\zzp)%640), %((\zzk*(\zzn+1)+\zzp)%640), %((\zzk*(\zzn+2)+\zzp)%640), %((\zzk*(\zzn+3)+\zzp)%640), %((\zzk*(\zzn+4)+\zzp)%640), %((\zzk*(\zzn+5)+\zzp)%640), %((\zzk*(\zzn+6)+\zzp)%640), %((\zzk*(\zzn+7)+\zzp)%640)
.elseif \zzj == 0
zze8 640,641,640,641,640,641,640,641
.else
zze8 642,642,642,642,642,642,642,642
.endif
.endm
.macro zzg3 zzk, zzn
.if \zzk > 0
zze8 %((\zzk*\zzn)%640), %((\zzk*\zzn+160)%640), %(((\zzk+1)*\zzn)%640), %(((\zzk+1)*\zzn+160)%640), %(((\zzk+4)*\zzn)%640), %(((\zzk+4)*\zzn+160)%640), %(((\zzk+5)*\zzn)%640), %(((\zzk+5)*\zzn+160)%640)
.else
zze8 %(640+(\zzn%2)), 642, %(((\zzk+1)*\zzn)%640), %(((\zzk+1)*\zzn+160)%640), %(((\zzk+4)*\zzn)%640), %(((\zzk+4)*\zzn+160)%640), %(((\zzk+5)*\zzn)%640), %(((\zzk+5)*\zzn+160)%640)
.endif
.endm
.p2align 8
.Ltab1:
.set .Lq, 0
.rept 51200
zzg1 %((80*(.Lq/6400) + 16*((.Lq/64)%5) + .Lq%16)/2), %((.Lq%2)*160), %(32*((.Lq/320)%20) + 8*((.Lq/16)%4)), %(80*(.Lq/6400) + 16*((.Lq/64)%5) + .Lq%16)
.set .Lq, .Lq+1
.endr
.p2align 8
.Ltab3:
.set .Lq, 0
.rept 51200
zzg3 %(16*((.Lq/320)%20) + 8*((.Lq/32)%2) + 2*((.Lq/16)%2)), %(80*(.Lq/6400) + (1-((.Lq/64)%5)/4)*(32*(((.Lq/64)%5)/2) + 8*((.Lq%16)/4) + 4*(((.Lq/64)%5)%2) + .Lq%4) + (((.Lq/64)%5)/4)*(64 + .Lq%16))
.set .Lq, .Lq+1
.endr
.noaltmacro
""")
    return "\n".join(L)

STAMPS = False
STAMP_WS = 0x3000000
def stamp(k, i):
    if not STAMPS: return
    if i == 0:
        k("s_memrealtime s[62:63]")
    k(f"s_memtime {sr(64+2*i,2)}")
def stamp_flush(k, n, slot):
    if not STAMPS: return
    k("s_memrealtime s[60:61]")
    k("s_load_dwordx2 s[58:59], s[0:1], 64")
    k("s_mov_b64 exec, -1")
    k("s_waitcnt lgkmcnt(0)")
    k("v_lshrrev_b32 v1, 6, v0")
    k("v_lshlrev_b32 v1, 6, v1")
    k(f"s_lshl_b32 s57, s2, 9")
    k(f"s_add_u32 s57, s57, {STAMP_WS + slot*0x40000}")
    k("v_add_u32 v1, s57, v1")
    k("v_mov_b32 v2, s62"); k("global_store_dword v1, v2, s[58:59]")
    k("v_mov_b32 v2, s60"); k("global_store_dword v1, v2, s[58:59] offset:4")
    for i in range(n):
        k(f"v_mov_b32 v{3+i}, s{64+2*i}"); k(f"global_store_dword v1, v{3+i}, s[58:59] offset:{8+4*i}")

class Stamper:
    on = False
    slots = {}
    def __init__(self, k):
        self.k = k; self.n = 0; self.names = []
    def __call__(self, name):
        if not Stamper.on: return
        k = self.k
        if self.n == 0: k("s_memrealtime s[62:63]")
        k(f"s_memtime {sr(64+2*self.n,2)}"); k("s_waitcnt lgkmcnt(0)")
        self.names.append(name); self.n += 1
        assert self.n <= 14
    def flush(self, n=None):
        if not Stamper.on: return
        k = self.k
        k("s_waitcnt vmcnt(0)"); self("drain")
        slot = Stamper.slots.setdefault(getattr(k, 'role', k.name), (len(Stamper.slots), list(self.names)))[0]
        k("s_memrealtime s[60:61]")
        k("s_load_dwordx2 s[58:59], s[0:1], 64")
        k("s_mov_b64 exec, -1")
        k("s_waitcnt lgkmcnt(0)")
        k("v_lshrrev_b32 v1, 6, v0"); k("v_lshlrev_b32 v1, 6, v1")
        k(f"s_lshl_b32 s57, s2, 9"); k(f"s_add_u32 s57, s57, {STAMP_WS + slot*0x80000}")
        k("v_add_u32 v1, s57, v1")
        k("v_mov_b32 v2, s62"); k("global_store_dword v1, v2, s[58:59]")
        k("v_mov_b32 v2, s60"); k("global_store_dword v1, v2, s[58:59] offset:4")
        for i in range(self.n):
            k(f"v_mov_b32 v{3+i}, s{64+2*i}"); k(f"global_store_dword v1, v{3+i}, s[58:59] offset:{8+4*i}")
        self.n -= 1; self.names.pop()

def getpc(k, s, label):
    k(f"s_getpc_b64 {sr(s,2)}")
    k(f"s_add_u32 s{s}, s{s}, {label}@rel32@lo+4")
    k(f"s_addc_u32 s{s+1}, s{s+1}, {label}@rel32@hi+12")

def pf_code(k, nthr, s=44, v=1, vd=2):
    getpc(k, s, ".Ltext0")
    k(f"s_mov_b32 s{s+2}, .Ltext1-.Ltext0"); k(f"s_mov_b32 s{s+3}, 0x00020000")
    k(f"v_lshlrev_b32 v{v}, 7, v0")
    n = 65536 // (nthr*128)
    for j in range(n):
        if j: k(f"v_add_u32 v{v}, {nthr*128}, v{v}")
        k(f"buffer_load_dword v{vd+j}, v{v}, {sr(s,4)}, 0 offen")
    return n

def pf_text(sid, nthr, s, v, vd):
    sh = {256: 15, 512: 16}[nthr]
    return [[f"s_getpc_b64 {sr(s,2)}", f"s_add_u32 s{s}, s{s}, .Ltext0@rel32@lo+4", f"s_addc_u32 s{s+1}, s{s+1}, .Ltext0@rel32@hi+12",
             f"s_lshr_b32 s{s+3}, s{sid}, 3", f"s_lshl_b32 s{s+3}, s{s+3}, {sh}", f"v_lshl_add_u32 v{v}, v0, 7, s{s+3}",
             f"s_mov_b32 s{s+2}, .Ltext1-.Ltext0", f"s_mov_b32 s{s+3}, 0x00020000",
             f"buffer_load_dword v{vd}, v{v}, {sr(s,4)}, 0 offen"]]

def srd(k, s, base, off, size):
    k(f"s_add_u32 s{s}, s{base}, {off}")
    k(f"s_addc_u32 s{s+1}, s{base+1}, 0")
    k(f"s_mov_b32 s{s+2}, {size}")
    k(f"s_mov_b32 s{s+3}, 0x00020000")

def n1_of_p(k, vd, vp, t0, t1):
    k(f"v_and_b32 v{t0}, 3, v{vp}")
    k(f"v_bfe_u32 v{t1}, v{vp}, 2, 1")
    k(f"v_lshl_or_b32 v{t0}, v{t1}, 4, v{t0}")
    k(f"v_bfe_u32 v{t1}, v{vp}, 7, 2")
    k(f"v_lshl_or_b32 v{t0}, v{t1}, 2, v{t0}")
    k(f"v_bfe_u32 v{t1}, v{vp}, 9, 1")
    k(f"v_lshl_or_b32 v{t0}, v{t1}, 5, v{t0}")
    k(f"v_bfe_u32 v{t1}, v{vp}, 3, 4")
    k(f"v_lshl_or_b32 v{t0}, v{t0}, 5, v{t1}")
    k(f"v_lshrrev_b32 v{t1}, 10, v{vp}")
    k(f"v_lshl_or_b32 v{vd}, v{t1}, 4, v{t0}")

def engineA(k, mode, sid=2):
    aoff = {'p0': 0, 'p4': 64, 'wop': 40}[mode]
    stamp(k, 0)
    k(f"s_load_dwordx2 s[4:5], s[0:1], {aoff}")
    k(f"s_load_dwordx2 s[6:7], s[0:1], 64")
    if mode == 'wop':
        k(f"s_lshr_b32 s20, s{sid}, 3"); k(f"s_and_b32 s21, s{sid}, 7")
    else:
        k(f"s_and_b32 s24, s{sid}, 7"); k(f"s_lshr_b32 s25, s{sid}, 3")
        k("s_lshr_b32 s20, s24, 1"); k("s_lshl_b32 s20, s20, 3"); k("s_lshr_b32 s26, s25, 2"); k("s_add_u32 s20, s20, s26")
        k("s_and_b32 s21, s24, 1"); k("s_lshl_b32 s21, s21, 2"); k("s_and_b32 s26, s25, 3"); k("s_add_u32 s21, s21, s26")
    k("v_lshrrev_b32 v1, 6, v0")
    k("v_and_b32 v2, 63, v0")
    k("v_readfirstlane_b32 s22, v1")
    k("v_and_b32 v3, 15, v0")
    k("v_bfe_u32 v4, v0, 4, 2")
    k("v_lshlrev_b32 v5, 4, v2")
    k("s_mul_i32 s24, s21, 102400")
    k("s_mul_i32 s23, s22, 5120")
    VA = 16; VB = 96; VD = 136; VG = 156; VS = 160; VONE = 164; VRES = 168
    def dma(c):
        k(f"s_add_u32 m0, s23, {c*20480}")
        for f in range(4):
            k(f"buffer_load_dwordx4 v5, s[8:11], m0 offen offset:{f*1024} lds")
        k(f"s_add_u32 m0, s23, {c*20480+4096}")
        k(f"buffer_load_dwordx4 v5, s[8:11], m0 offen lds")
    static_b = mode in ('p0', 'wop')
    if static_b:
        getpc(k, 26, ".Ltab1")
        srd(k, 8, 26, "s24", 102400)
        for c in range(5): dma(c)
    k("s_lshl_b32 s25, s20, 6"); k("s_lshl_b32 s26, s22, 4"); k("s_add_u32 s25, s25, s26")
    k("v_add_u32 v6, s25, v3")
    if mode == 'p0':
        n1_of_p(k, 7, 6, 8, 9)
        k("v_mul_u32_u24 v7, 1280, v7"); k("v_lshl_add_u32 v7, v4, 4, v7")
    elif mode == 'p4':
        k("v_lshrrev_b32 v7, 5, v6"); k("v_mul_u32_u24 v7, 40960, v7"); k("v_lshl_add_u32 v7, v4, 9, v7")
        k("v_and_b32 v8, 31, v6"); k("v_lshl_add_u32 v7, v8, 4, v7")
    else:
        k("v_lshrrev_b32 v8, 4, v6")
        k("v_mul_u32_u24 v8, 20, v8")
        k("v_and_b32 v9, 3, v6"); k("v_add_u32 v8, v8, v9")
        k("v_bfe_u32 v10, v6, 3, 1"); k("v_lshl_add_u32 v8, v10, 2, v8")
        k("v_bfe_u32 v10, v6, 2, 1"); k("v_lshl_add_u32 v8, v10, 3, v8")
        k("v_subrev_u32 v10, 512, v6"); k("v_lshrrev_b32 v10, 2, v10")
        k("v_mul_u32_u24 v10, 20, v10"); k("v_add3_u32 v10, v10, v9, 16")
        k("v_cmp_gt_u32 vcc, 512, v6")
        k("v_cndmask_b32 v7, v10, v8, vcc")
        k("v_mul_u32_u24 v7, 1280, v7"); k("v_lshl_add_u32 v7, v4, 4, v7")
    for r in range(4): k(f"v_mov_b32 v{VONE+r}, 0x3f803f80")
    for r in range(28): k(f"v_mov_b32 v{VD+r}, 0")
    k("v_lshlrev_b32 v10, 12, v3"); k("v_lshl_add_u32 v10, v4, 3, v10")
    k("s_waitcnt lgkmcnt(0)")
    stamp(k, 1)
    if mode == 'p4':
        srd(k, 12, 6, AFO, 0x280000)
        k(f"s_add_u32 s24, s24, {WOP}")
        srd(k, 8, 6, "s24", 102400)
    else:
        srd(k, 12, 4, 0, 2048*1280 if mode == 'p0' else 640*1280)
    nvm = []
    cnt = 25 if static_b else 0
    for c in range(5):
        if not static_b:
            dma(c); cnt += 5
        for s in range(4*c, 4*c+4):
            if mode == 'p4':
                if s % 2 == 0: k(f"s_movk_i32 s27, {s*2048}" if s*2048 < 32768 else f"s_mov_b32 s27, {s*2048}")
                k(f"buffer_load_dwordx4 {vr(VA+4*s,4)}, v7, s[12:15], s27 offen offset:{(s%2)*2048}")
            else:
                k(f"buffer_load_dwordx4 {vr(VA+4*s,4)}, v7, s[12:15], 0 offen offset:{s*64}")
            cnt += 1
        nvm.append(cnt)
    k("s_mul_i32 s28, s21, 80*4096"); k("s_lshl_b32 s29, s25, 1"); k("s_add_u32 s28, s28, s29")
    if mode == 'p4':
        srd(k, 16, 6, XB, 0x280000)
        for jl in range(5):
            k(f"s_add_u32 s29, s28, {jl*65536}")
            k(f"buffer_load_dwordx2 {vr(VRES+2*jl,2)}, v10, s[16:19], s29 offen")
            cnt += 1
    total = cnt
    def breads(s):
        for jl in range(5):
            k(f"ds_read_b128 {vr(VB+20*(s%2)+4*jl,4)}, v{5 if s*5120+jl*1024 < 65536 else 11} offset:{(s*5120+jl*1024) % 65536}")
    k("v_add_u32 v11, 0x10000, v5")
    stamp(k, 2)
    k(f"s_waitcnt vmcnt({total-nvm[0]})"); k("s_barrier")
    stamp(k, 3)
    if STAMPS: k("s_waitcnt lgkmcnt(0)")
    breads(0)
    for s in range(20):
        if s+1 < 20:
            if (s+1) % 4 == 0:
                k(f"s_waitcnt vmcnt({total-nvm[(s+1)//4]})"); k("s_barrier")
                if STAMPS:
                    k("s_waitcnt lgkmcnt(0)"); stamp(k, 3+(s+1)//4); k("s_waitcnt lgkmcnt(0)")
            breads(s+1)
            k("s_waitcnt lgkmcnt(5)")
        else:
            k("s_waitcnt lgkmcnt(0)")
        for jl in range(5):
            k(f"v_mfma_f32_16x16x32_bf16 {vr(VD+4*jl,4)}, {vr(VA+4*s,4)}, {vr(VB+20*(s%2)+4*jl,4)}, {vr(VD+4*jl,4)}")
        if mode == 'p0':
            k(f"v_mfma_f32_16x16x32_bf16 {vr(VG,4)}, {vr(VA+4*s,4)}, {vr(VA+4*s,4)}, {vr(VG,4)}")
        if mode != 'p4':
            k(f"v_mfma_f32_16x16x32_bf16 {vr(VS,4)}, {vr(VA+4*s,4)}, {vr(VONE,4)}, {vr(VS,4)}")
    stamp(k, 8)
    T = VA
    lend = k.lab('end')
    if mode == 'p0':
        srd(k, 16, 6, XA, 0x280000)
        for jl in range(5):
            k(f"v_cvt_pk_bf16_f32 v{T+2*jl}, v{VD+4*jl}, v{VD+4*jl+1}")
            k(f"v_cvt_pk_bf16_f32 v{T+2*jl+1}, v{VD+4*jl+2}, v{VD+4*jl+3}")
            k(f"s_add_u32 s29, s28, {jl*65536}")
            k(f"buffer_store_dwordx2 {vr(T+2*jl,2)}, v10, s[16:19], s29 offen")
        k("s_cmp_lg_u32 s21, 0"); k(f"s_cbranch_scc1 {lend}")
        k("v_and_b32 v12, 3, v3")
        for r in range(1, 4):
            k(f"v_cmp_eq_u32 vcc, {r}, v12")
            k(f"v_cndmask_b32 v{VG}, v{VG}, v{VG+r}, vcc")
            k(f"v_cndmask_b32 v{VS}, v{VS}, v{VS+r}, vcc")
        k(f"v_mul_f32 v13, {float(1/640).hex() if False else hex(np.float32(1/640).view(np.uint32))}, v{VS}")
        k(f"v_fma_f32 v14, -v13, v{VS}, v{VG}")
        k("v_max_f32 v14, 0, v14")
        k("v_lshrrev_b32 v12, 2, v3")
        k("v_cmp_eq_u32 vcc, v12, v4")
        k("v_lshlrev_b32 v15, 2, v6")
        srd(k, 16, 6, SSQ0, 0x8000)
        k("s_mov_b64 exec, vcc")
        k("buffer_store_dword v14, v15, s[16:19], 0 offen")
        k(f"s_movk_i32 s29, {DC0-SSQ0}")
        k("buffer_store_dword v13, v15, s[16:19], s29 offen")
    elif mode == 'wop':
        k("s_lshr_b32 s29, s25, 5"); k("s_mul_i32 s29, s29, 5120"); k("s_add_u32 s29, s29, s24")
        k("s_and_b32 s30, s22, 1"); k("s_lshl_b32 s30, s30, 9"); k("s_add_u32 s29, s29, s30")
        k("v_lshrrev_b32 v12, 1, v4"); k("v_lshlrev_b32 v12, 8, v12"); k("v_lshl_add_u32 v12, v3, 4, v12")
        k("v_and_b32 v13, 1, v4"); k("v_lshl_add_u32 v12, v13, 3, v12")
        srd(k, 16, 6, WOP, 819200)
        k("s_cmp_eq_u32 s21, 0"); k("s_cselect_b32 s30, 1, 99")
        k("v_cmp_eq_u32 vcc, s30, v3")
        for r in range(4):
            k(f"v_mul_f32 v{VS+r}, {hex(np.float32(1/640).view(np.uint32))}, v{VS+r}")
            k(f"v_cndmask_b32 v{VD+r}, v{VD+r}, v{VS+r}, vcc")
        for jl in range(5):
            k(f"v_cvt_pk_bf16_f32 v{T+2*jl}, v{VD+4*jl}, v{VD+4*jl+1}")
            k(f"v_cvt_pk_bf16_f32 v{T+2*jl+1}, v{VD+4*jl+2}, v{VD+4*jl+3}")
            if jl == 4: k("s_add_u32 s29, s29, 4096")
            k(f"buffer_store_dwordx2 {vr(T+2*jl,2)}, v12, s[16:19], s29 offen offset:{(jl%4)*1024}")
    else:
        k("s_waitcnt vmcnt(0)")
        srd(k, 16, 6, XA, 0x280000)
        srd(k, 12, 6, SSQ2, 0x8000)
        k("s_cmp_eq_u32 s21, 0"); k("s_cselect_b32 s30, 1, 99")
        k("v_cmp_eq_u32 vcc, s30, v3")
        k("v_lshlrev_b32 v15, 4, v4"); k("s_lshl_b32 s31, s25, 2"); k(f"s_add_u32 s31, s31, {DCD-SSQ2}")
        lsk = k.lab('sk')
        k("s_cmp_lg_u32 s21, 0"); k(f"s_cbranch_scc1 {lsk}")
        k("s_mov_b64 exec, vcc")
        k(f"buffer_store_dwordx4 {vr(VD,4)}, v15, s[12:15], s31 offen")
        k("s_mov_b64 exec, -1")
        k(f"{lsk}:")
        for r in range(4): k(f"v_cndmask_b32 v{VD+r}, v{VD+r}, 0, vcc")
        for jl in range(5):
            for h in range(2):
                k(f"v_lshlrev_b32 v{T}, 16, v{VRES+2*jl+h}"); k(f"v_and_b32 v{T+1}, 0xffff0000, v{VRES+2*jl+h}")
                k(f"v_add_f32 v{VD+4*jl+2*h}, v{VD+4*jl+2*h}, v{T}"); k(f"v_add_f32 v{VD+4*jl+2*h+1}, v{VD+4*jl+2*h+1}, v{T+1}")
            k(f"v_cvt_pk_bf16_f32 v{T+4+2*jl}, v{VD+4*jl}, v{VD+4*jl+1}")
            k(f"v_cvt_pk_bf16_f32 v{T+4+2*jl+1}, v{VD+4*jl+2}, v{VD+4*jl+3}")
            k(f"s_add_u32 s29, s28, {jl*65536}")
            k(f"buffer_store_dwordx2 {vr(T+4+2*jl,2)}, v10, s[16:19], s29 offen")
        for r in range(4):
            k(f"v_mul_f32 v{VG+r}, v{VD+r}, v{VD+r}")
        for jl in range(1, 5):
            for r in range(4): k(f"v_fmac_f32 v{VG+r}, v{VD+4*jl+r}, v{VD+4*jl+r}")
        for sh in (8, 4, 2, 1):
            for r in range(4): k(f"v_add_f32_dpp v{VG+r}, v{VG+r}, v{VG+r} row_ror:{sh} row_mask:0xf bank_mask:0xf")
        for r in range(1, 4):
            k(f"v_cmp_eq_u32 vcc, {r}, v3")
            k(f"v_cndmask_b32 v{VG}, v{VG}, v{VG+r}, vcc")
        k("v_cmp_gt_u32 vcc, 4, v3")
        k("v_lshl_add_u32 v15, v3, 2, v15")
        k("s_lshl_b32 s31, s25, 2")
        k("s_mov_b64 exec, vcc")
        k(f"buffer_atomic_add_f32 v{VG}, v15, s[12:15], s31 offen")
    k(f"{lend}:")
    if STAMPS:
        stamp(k, 9); k("s_waitcnt vmcnt(0)"); stamp(k, 10)
    stamp_flush(k, 11, {'p0': 0, 'wop': 1, 'p4': 2}[mode])
    k("s_endpgm")

def simple_kernel(name, nwg, fn, vgprs=192, sgprs=96, agprs=0):
    k = Kern(name, vgprs=vgprs, sgprs=sgprs, agprs=agprs)
    lx = k.lab('x')
    k(f"s_cmp_ge_u32 s2, {nwg}"); k(f"s_cbranch_scc1 {lx}")
    fn(k)
    k(f"{lx}:"); k("s_endpgm")
    return k

ROLEINFO = {}
def merged(name, roles, vgprs=192, sgprs=96, nthr=256, pre=()):
    k = Kern(name, vgprs=vgprs, sgprs=sgprs)
    labs = [k.lab('role') for _ in roles]
    for x in pre: k(x)
    tot = 0
    for (rn, ns, na, fn), l in zip(roles, labs):
        k(f"s_cmp_lt_u32 s2, {na}"); k(f"s_cbranch_scc1 {l}"); k(f"s_sub_u32 s2, s2, {ns}")
        if na < ns:
            lx = k.lab('x'); k(f"s_cbranch_scc0 {lx}"); k("s_endpgm"); k(f"{lx}:")
        tot += ns
    k("s_endpgm")
    for (rn, ns, na, fn), l in zip(roles, labs):
        k(f"{l}:"); k.role = rn; ROLEINFO[rn] = (na, nthr//64); fn(k)
    k.total = tot
    return k

def blocker():
    k = Kern("blk", vgprs=8, sgprs=16)
    k("s_mov_b32 s3, 0")
    l = k.lab()
    k(f"{l}:"); k("s_sleep 127"); k("s_add_u32 s3, s3, 1"); k("s_cmp_lt_u32 s3, 60"); k(f"s_cbranch_scc1 {l}"); k("s_endpgm")
    return (k, 1, 64, 0)

def asmcheck(path):
    import subprocess
    r = subprocess.run(["clang", "-x", "assembler", "-target", "amdgcn-amd-amdhsa", "-mcpu=gfx950", "-c", path, "-o", "chk.o"], capture_output=True, text=True)
    if r.returncode: print(r.stderr[:1500]); raise SystemExit(1)

def build(launches, path, extra=''):
    hdr = [f"; @launch kernel={k.name}_kernel grid=({n},1,1) block=({b},1,1) lds={l}" for k, n, b, l in launches]
    seen = {}
    for k, *_ in launches: seen[k.name] = k
    txt = "\n".join(hdr) + '\n.amdgcn_target "amdgcn-amd-amdhsa--gfx950"\n.text\n.p2align 8\n.Ltext0:\n'
    txt += "".join(k.text() for k in seen.values()) + ".Ltext1:\n"
    txt += '.section .rodata,"a"\n' + "".join(k.desc() for k in seen.values()) + tables() + extra
    open(path, "w").write(txt)
    for k in seen.values(): print(k.name, k.maxregs, len(k.lines))
    asmcheck(path)

if __name__ == "__main__":
    STAMPS = "stamps" in sys.argv
    emp = simple_kernel("emp", 256, lambda k: None)
    p0 = simple_kernel("p0", 256, lambda k: engineA(k, 'p0'))
    wop = simple_kernel("wop", 80, lambda k: engineA(k, 'wop'))
    p4 = simple_kernel("p4", 256, lambda k: engineA(k, 'p4'))
    build([blocker(), (p0, 256, 256, 102400), (wop, 80, 256, 102400), (p4, 256, 256, 102400), (p0, 256, 256, 102400), (p4, 256, 256, 102400), (emp, 256, 256, 102400), (emp, 256, 256, 102400), (emp, 256, 256, 0), (emp, 1, 64, 0)], "t1.s")
```

```python
import sys
from gen import *
from cf import *
from eb import *
from attn import *
from ea import *
import json
Stamper.on = 'stamps' in sys.argv
k0 = merged("k0", [("gp", 80, 80, lambda k: engineB(k, 'gp')), ("wtp", 80, 80, wtpack), ("p0", 256, 256, lambda k: engineA2(k, 'p0'))], vgprs=208)
k1 = merged("k1", [("wop", 80, 80, lambda k: engineA2(k, 'wop')), ("wot", 40, 40, wotpack),
                   ("cf1", 320, 320, lambda k: colfilter(k, XA, XB, SSQ0, zero_ssq2=True))], vgprs=252)
p4 = merged("p4", [("p4", 256, 256, lambda k: engineA2(k, 'p4', hook=lambda k: pf_text(2, 256, 44, 180, 181)))])
fin = merged("fin", [("fin", 256, 256, lambda k: engineA2(k, 'fin'))])
cf2 = merged("cf2", [("cf2", 320, 320, lambda k: colfilter(k, XA, XB, SSQ2))], vgprs=252)
qkv = merged("qkv", [("qkv", 256, 256, lambda k: engineB(k, 'qkv', afx=True, hook=lambda k: pf_text(2, 256, 52, 17, 18)))], vgprs=256)
at = merged("at", [("at", 256, 256, attention)], vgprs=208, nthr=512, pre=["s_mov_b32 s42, 0", ".Lat_common:"])
at2 = Kern("at2", vgprs=208, sgprs=96); at2("s_mov_b32 s42, 1"); at2("s_branch .Lat_common")
L = [(k0, k0.total, 256, EA_LDS), (k1, k1.total, 256, EA_LDS), (qkv, 256, 256, EB_LDS), (at, 256, 512, AT_LDS), (p4, 256, 256, EA_LDS),
     (cf2, 320, 256, CF_LDS), (qkv, 256, 256, EB_LDS), (at2, 256, 512, AT_LDS), (fin, 256, 256, EA_LDS)]
if Stamper.on:
    build([blocker()] + L, "full_s.s", cf_tables())
    json.dump({n: [v[0], v[1], ROLEINFO[n][0], ROLEINFO[n][1]] for n, v in Stamper.slots.items()}, open("full_s.json", "w"))
else:
    build(L, f"../cdna_kernels/{NAME}.s", cf_tables())
    build([blocker()] + L, "full_q.s", cf_tables())
```

```python
import numpy as np
from asmlib import *
from layout import *
from gen import getpc, srd, Stamper, pf_text
AT_LDS = 163840
import sys
ATV = [a[4:] for a in sys.argv if a.startswith('atv=')]
ATV = ATV[0] if ATV else '0'
SCHED = {'0': "e0 pv1 e1 e2 e3 s8 e4 e5 c0 e6 c1 e7 c2 dma e8 c3 e9 e10 pv0 e11 e12 c4 e13 c5 e14 e15 c6 c7",
         '1': "e0 e1 e2 e3 e4 pv1 e5 c0 e6 c1 e7 c2 c3 s8 e8 dma e9 e10 e11 e12 pv0 e13 c4 e14 c5 e15 c6 c7",
         '2': "e0 e1 e2 e3 e4 s8 e5 c0 e6 c1 e7 c2 c3 pv1 e8 dma e9 e10 e11 e12 pv0 e13 c4 e14 c5 e15 c6 c7",
         '3': "e0 e1 e2 e3 pv1 e4 e5 c0 e6 c1 e7 s8 c2 e8 c3 dma e9 e10 e11 pv0 e12 c4 e13 c5 e14 e15 c6 c7",
         }

def attention(k, sid=2):
    SB = 16; P = 48; NM = 56; O = 88; KB = 120; VB = 140; Q = 172; AD = 188; MX = 200
    st = Stamper(k); st("start")
    k("s_load_dwordx2 s[4:5], s[0:1], 64")
    k("v_lshrrev_b32 v1, 6, v0"); k("v_and_b32 v2, 63, v0")
    k("v_readfirstlane_b32 s22, v1")
    k(f"s_and_b32 s20, s{sid}, 7"); k("s_lshl_b32 s20, s20, 2"); k(f"s_bfe_u32 s21, s{sid}, 0x20003"); k("s_add_u32 s20, s20, s21")
    k(f"s_lshr_b32 s21, s{sid}, 5")
    k("s_and_b32 s23, s22, 3"); k("s_lshr_b32 s24, s22, 2")
    k("v_lshlrev_b32 v3, 4, v2")
    k("v_and_b32 v4, 31, v2"); k("v_lshrrev_b32 v5, 5, v2")
    k("v_lshlrev_b32 v6, 3, v4")
    k("s_lshl_b32 s25, s21, 3"); k("s_lshl_b32 s26, s23, 1"); k("s_add_u32 s25, s25, s26")
    k("s_add_u32 s26, s25, s24"); k("s_xor_b32 s27, s26, 1")
    k("s_lshl_b32 s28, s20, 6")
    for t in range(2):
        k(f"s_add_u32 s29, s28, s{26+t}")
        k(f"s_lshl_b32 s{30+t}, s29, 10"); k(f"s_add_u32 s{30+t}, s{30+t}, {Q16}")
        k(f"s_lshl_b32 s{32+t}, s29, 8"); k(f"s_add_u32 s{32+t}, s{32+t}, {Q4}")
    k("s_mul_i32 s29, s20, 163840"); k(f"s_add_u32 s29, s29, {KV}")
    k("s_lshl_b32 s34, s22, 10")
    k("s_mov_b32 s36, 0x000fffff"); k("s_mov_b32 s37, 0x000fffff")
    k("s_mov_b32 s38, 0")
    k("s_mul_i32 s35, s24, 5120")
    k(f"v_add_u32 v{AD}, s35, v3")
    k(f"v_lshl_add_u32 v{AD+1}, v2, 3, s35")
    k("v_mad_u32_u24 v7, v5, 20, v4"); k(f"v_lshl_add_u32 v{AD+2}, v7, 4, s35")
    for sg in range(1, 3):
        for j in range(3): k(f"v_add_u32 v{AD+3*sg+j}, 61440, v{AD+3*(sg-1)+j}")
    k("v_cmp_eq_u32 vcc, 20, v4"); k("v_cmp_eq_u32 s[40:41], 24, v4"); k("s_or_b64 vcc, vcc, s[40:41]")
    k("v_mov_b32 v7, 0x3f803f80"); k(f"v_cndmask_b32 v{VB}, 0, v7, vcc")
    for r in range(1, 32): k(f"v_mov_b32 v{VB+r}, v{VB}")
    k("s_waitcnt lgkmcnt(0)")
    st("karg")
    srd(k, 8, 4, "s29", 163840)
    srd(k, 16, 4, 0, WS_END)
    def dma(r): return [f"s_add_u32 m0, s34, {r*8192}", "buffer_load_dwordx4 v3, s[8:11], m0 offen lds"]
    for t in range(2):
        k(f"buffer_load_dwordx4 {vr(Q+8*t,4)}, v3, s[16:19], s{30+t} offen")
        k(f"buffer_load_dwordx2 {vr(Q+8*t+4,2)}, v6, s[16:19], s{32+t} offen")
    for r in range(5):
        for x in dma(r): k(x)
    k("v_cmp_eq_u32 vcc, 0, v5")
    k("s_waitcnt vmcnt(5)")
    for t in range(2):
        for j in range(2):
            k(f"v_cndmask_b32 v{Q+8*t+6+j}, v{Q+8*t+4+j}, 0, vcc")
            k(f"v_cndmask_b32 v{Q+8*t+4+j}, 0, v{Q+8*t+4+j}, vcc")
    k("s_waitcnt vmcnt(3)"); k("s_barrier"); st("bar0")
    def kreads(it):
        sg, o = it // 6, (it % 6)*10240; b = KB+10*(it % 2)
        return [f"ds_read_b128 {vr(b,4)}, v{AD+3*sg} offset:{o}", f"ds_read_b64 {vr(b+8,2)}, v{AD+3*sg+1} offset:{o+2048}",
                f"ds_read_b128 {vr(b+4,4)}, v{AD+3*sg} offset:{o+1024}"]
    def vreads(it):
        sg, o = it // 6, (it % 6)*10240; b = VB+16*(it % 2)
        return ["s_mov_b64 exec, s[36:37]"] + [f"ds_read_b128 {vr(b+4*j,4)}, v{AD+3*sg+2} offset:{o+2560+640*j}" for j in range(4)] + ["s_mov_b64 exec, -1"]
    def s16(d, kb, kt, t, c): return f"v_mfma_f32_32x32x16_bf16 {vr(d,16)}, {vr(kb+4*kt,4)}, {vr(Q+8*t,4)}, {c}"
    def s8(d, kb, kt, t): return f"v_mfma_f32_32x32x8bf16_1k {vr(d,16)}, {vr(kb+8,2)}, {vr(Q+8*t+4+2*kt,2)}, {vr(d,16)}"
    def maxinto(m, d, first):
        if first: k(f"v_max_f32 v{m}, v{d}, v{d+1}")
        else: k(f"v_max3_f32 v{m}, v{d}, v{d+1}, v{m}")
        for j in range(1, 8): k(f"v_max3_f32 v{m}, v{d+2*j}, v{d+2*j+1}, v{m}")
    def fill_negm():
        k(f"v_permlane32_swap_b32 v{MX}, v{MX+1}")
        k(f"v_max_f32 v{MX}, v{MX}, v{MX+1}")
        k(f"v_mov_b32 v{MX+1}, v{MX}")
        k(f"v_permlane32_swap_b32 v{MX}, v{MX+1}")
        for t in range(2):
            k(f"v_sub_f32 v{NM+16*t}, 0, v{MX+t}"); k(f"v_sub_f32 v{NM+16*t+1}, 0, v{MX+t}")
        for j in range(1, 8):
            for t in range(2): k(f"v_mov_b64 {vr(NM+16*t+2*j,2)}, {vr(NM+16*t,2)}")
    for x in kreads(0)[:2]: k(x)
    k("s_waitcnt lgkmcnt(0)")
    for t in range(2): k(s16(SB+16*t, KB, 0, t, '0'))
    for t in range(2): k(s8(SB+16*t, KB, 0, t))
    for t in range(2): maxinto(MX+t, SB+16*t, True)
    fill_negm()
    st("minit")
    lmain = k.lab('main'); k(f"{lmain}:")
    for x in kreads(0) + vreads(0): k(x)
    k("s_waitcnt lgkmcnt(5)")
    k(s16(SB, KB, 0, 0, vr(NM, 16))); k(s8(SB, KB, 0, 0))
    NT = 64
    def tinfo(i): return i // 4, (i >> 1) & 1, i & 1
    def pv(i, h):
        it, kt, t = tinfo(i)
        c = '0' if (i < 2 and h == 0) else vr(O+16*t, 16)
        return f"v_mfma_f32_32x32x16_bf16 {vr(O+16*t,16)}, {vr(VB+16*(it % 2)+8*kt+4*h,4)}, {vr(P+4*h,4)}, {c}"
    def prefetch():
        l2 = k.lab('pf2'); le = k.lab('pfe')
        k(f"s_lshr_b32 s43, s{sid}, 3"); k("s_lshl_b32 s43, s43, 9"); k("v_add_u32 v14, s43, v0")
        k(f"s_and_b32 s43, s{sid}, 7")
        k("v_lshlrev_b32 v15, 7, v14")
        k("s_cmp_lg_u32 s42, 0"); k(f"s_cbranch_scc1 {l2}")
        srd(k, 44, 4, WOP, 819200); k("buffer_load_dword v13, v15, s[44:47], 0 offen")
        k("s_and_b32 s48, s43, 1"); k("s_mul_i32 s48, s48, 1310720"); k(f"s_add_u32 s48, s48, {GP}")
        srd(k, 44, 4, "s48", 1310720); k("buffer_load_dword v13, v15, s[44:47], 0 offen")
        k("v_lshrrev_b32 v12, 2, v14"); k("v_lshlrev_b32 v12, 12, v12"); k("v_and_b32 v11, 0x180, v15"); k("v_add_u32 v12, v12, v11")
        k("s_lshl_b32 s48, s43, 9"); k("v_add_u32 v12, s48, v12")
        srd(k, 44, 4, XB, 640*4096); k("buffer_load_dword v13, v12, s[44:47], 0 offen")
        k("v_lshrrev_b32 v12, 6, v14"); k("v_lshlrev_b32 v12, 16, v12"); k("v_and_b32 v11, 0x1f80, v15"); k("v_add_u32 v12, v12, v11")
        k("s_lshl_b32 s48, s43, 13"); k("v_add_u32 v12, s48, v12")
        srd(k, 44, 4, WT, 320*8192); k("buffer_load_dword v13, v12, s[44:47], 0 offen")
        k(f"s_branch {le}")
        k(f"{l2}:")
        srd(k, 44, 4, WOT, 819200); k("buffer_load_dword v13, v15, s[44:47], 0 offen")
        getpc(k, 48, ".Ltab3"); srd(k, 44, 48, 0, 819200); k("buffer_load_dword v13, v15, s[44:47], 0 offen")
        k("s_mul_i32 s48, s43, 327680"); k(f"s_add_u32 s48, s48, {AFX}")
        srd(k, 44, 4, "s48", 327680); k("buffer_load_dword v13, v15, s[44:47], 0 offen")
        k(f"{le}:")
        for x in pf_text(sid, 512, 44, 15, 13)[0]: k(x)
    rnd = 5
    bars = {1: 2, 2: 4, 4: 11, 9: 19}
    issued = 5
    have = 1
    for it_ in range(16):
        have = bars.get(it_, have); assert (have+1)*8192 >= (it_+1)*10240
    for i in range(NT):
        it, kt, t = tinfo(i)
        sb = SB+16*(i % 2); sn = SB+16*((i+1) % 2)
        e = lambda r: k(f"v_exp_f32 v{sb+r}, v{sb+r}")
        c = lambda j: k(f"v_cvt_pk_bf16_f32 v{P+j}, v{sb+2*j}, v{sb+2*j+1}")
        nx = i+1 < NT
        if i in (3, 7, 15, 31, 47): st(f"t{i}")
        if nx:
            it2, kt2, t2 = tinfo(i+1); kb2 = KB+10*(it2 % 2)
            if i == 1: k("s_waitcnt lgkmcnt(7)")
            if i % 4 == 3: k("s_waitcnt lgkmcnt(0)")
            k(s16(sn, kb2, kt2, t2, vr(NM+16*t2, 16)))
        def reads_():
            if i % 4 == 0 and it+1 < 16:
                if it+1 in bars:
                    lb = k.lab('nb')
                    k("s_cmp_lg_u32 s38, 0"); k(f"s_cbranch_scc1 {lb}")
                    assert issued-1-bars[it+1] >= 0
                    k(f"s_waitcnt vmcnt({issued-1-bars[it+1]})"); k("s_barrier")
                    k(f"{lb}:")
                for x in kreads(it+1) + vreads(it+1): k(x)
            if i == 40: prefetch()
        def dma_():
            nonlocal issued
            if issued < 20:
                for x in dma(issued): k(x)
                issued += 1
        def pv1():
            if i > 0: k(pv(i-1, 1))
            reads_()
        def s8_():
            if nx: k(s8(sn, kb2, kt2, t2))
        def pv0():
            if i == 0: k("s_waitcnt lgkmcnt(7)")
            k(pv(i, 0))
        for tok in SCHED[ATV].split():
            if tok[0] == 'e': e(int(tok[1:]))
            elif tok[0] == 'c': c(int(tok[1:]))
            elif tok[0] == 'P': k(f"s_setprio {tok[1:]}")
            else: {'pv1': pv1, 's8': s8_, 'pv0': pv0, 'dma': dma_}[tok]()
    k(pv(NT-1, 1))
    st("loop")
    k("v_cmp_eq_u32 vcc, 0, v5")
    for t in range(2): k(f"v_cndmask_b32 v{O+16*t+12}, v{O+16*t+8}, v{O+16*t+12}, vcc")
    k(f"v_add_f32 v7, v{O+12}, v{O+28}")
    k("v_cmp_nle_f32 vcc, v7, 0x5f000000") if False else k("v_mov_b32 v8, 0x5f000000")
    k("v_cmp_nle_f32 vcc, v7, v8")
    lfb = k.lab('fb'); lcomb = k.lab('comb')
    k("s_cmp_lg_u32 s38, 0"); k(f"s_cbranch_scc1 {lcomb}")
    k(f"s_cbranch_vccnz {lfb}")
    k(f"{lcomb}:")
    k(f"v_mov_b32 v{O+16+13}, v{NM+16}")
    k("s_lshl_b32 s35, s22, 12"); k("v_add_u32 v8, s35, v3"); k("s_xor_b32 s35, s35, 0x4000"); k("v_add_u32 v9, s35, v3")
    k("s_waitcnt vmcnt(0) lgkmcnt(0)"); k("s_barrier")
    for j in range(4): k(f"ds_write_b128 v9, {vr(O+16+4*j,4)} offset:{1024*j}")
    k("s_mul_i32 s28, s26, 40960"); k(f"s_add_u32 s28, s28, {AFO}")
    k("s_lshl_b32 s29, s20, 10"); k("s_add_u32 s29, s29, s28")
    k("s_lshr_b32 s30, s20, 1"); k("s_lshl_b32 s30, s30, 9"); k("s_and_b32 s31, s20, 1"); k("s_lshl_b32 s31, s31, 3")
    k("s_add_u32 s30, s30, s31"); k("s_add_u32 s30, s30, s28"); k("s_add_u32 s30, s30, 32768")
    k("s_waitcnt lgkmcnt(0)"); k("s_barrier")
    X = SB
    k(f"ds_read_b128 {vr(X+12,4)}, v8 offset:3072")
    for j in range(3): k(f"ds_read_b128 {vr(X+4*j,4)}, v8 offset:{1024*j}")
    k("s_waitcnt lgkmcnt(3)")
    k(f"v_min_f32 v10, v{NM}, v{X+13}")
    k(f"v_sub_f32 v11, v10, v{NM}"); k(f"v_sub_f32 v12, v10, v{X+13}")
    k("v_exp_f32 v11, v11"); k("v_exp_f32 v12, v12")
    k(f"v_mul_f32 v10, v11, v{O+12}"); k(f"v_fmac_f32 v10, v12, v{X+12}")
    k("v_rcp_f32 v10, v10")
    k("v_mul_f32 v11, v11, v10"); k("v_mul_f32 v12, v12, v10")
    for r in range(12): k(f"v_mul_f32 v{O+r}, v11, v{O+r}")
    k("s_waitcnt lgkmcnt(0)")
    for r in range(12): k(f"v_fmac_f32 v{O+r}, v12, v{X+r}")
    for q in range(6): k(f"v_cvt_pk_bf16_f32 v{P+q}, v{O+2*q}, v{O+2*q+1}")
    k(f"buffer_store_dwordx4 {vr(P,4)}, v3, s[16:19], s29 offen")
    k("s_mov_b64 exec, 0xffffffff") if False else (k("s_mov_b32 exec_hi, 0"))
    k(f"buffer_store_dwordx2 {vr(P+4,2)}, v3, s[16:19], s30 offen")
    st("st"); st.flush()
    k("s_endpgm")
    k(f"{lfb}:")
    k("s_mov_b32 s38, 1"); k("s_mov_b32 s39, 0")
    k(f"v_mov_b32 v10, v{AD}"); k(f"v_mov_b32 v11, v{AD+1}")
    k(f"v_mov_b32 v{MX}, 0xff800000"); k(f"v_mov_b32 v{MX+1}, 0xff800000")
    ll = k.lab('fl'); k(f"{ll}:")
    k(f"ds_read_b128 {vr(KB,4)}, v10"); k(f"ds_read_b64 {vr(KB+8,2)}, v11 offset:2048"); k(f"ds_read_b128 {vr(KB+4,4)}, v10 offset:1024")
    k("s_waitcnt lgkmcnt(0)")
    for kt in range(2):
        for t in range(2): k(s16(SB+16*t, KB, kt, t, '0'))
        for t in range(2): k(s8(SB+16*t, KB, kt, t))
        for t in range(2): maxinto(MX+t, SB+16*t, False)
    k("v_add_u32 v10, 10240, v10"); k("v_add_u32 v11, 10240, v11")
    k("s_add_u32 s39, s39, 1"); k("s_cmp_lt_u32 s39, 16"); k(f"s_cbranch_scc1 {ll}")
    fill_negm()
    k(f"s_branch {lmain}")
```

```python
import numpy as np
from asmlib import *
from layout import *
from gen import getpc, srd, Stamper, pf_text

def f32hex(x): return hex(int(np.float32(x).view(np.uint32)))

def cf_tables():
    l = np.arange(64); g = l >> 4; n = l & 15; e = np.arange(8); u = e >> 2; r = e & 3
    out = []
    for t in range(4):
        for st in range(2):
            b = 32*st + 16*u[None, :] + 4*g[:, None] + r[None, :]
            d = 16*t + n[:, None]
            w = np.exp(-2j*np.pi*((b*d) % 64)/64)/8
            out += [w.real, w.imag]
    for t in range(2):
        a = 16*u[None, :] + 4*g[:, None] + r[None, :]
        c = 16*t + n[:, None]
        w = np.exp(-2j*np.pi*((a*c) % 32)/32)/np.sqrt(32)
        out += [w.real, w.imag]
    arr = np.array(out); arr[np.abs(arr) < 1e-9] = 0
    u32 = arr.astype(np.float16).reshape(-1).view(np.uint32)
    L = [".p2align 8", ".Ltabcf:"]
    for i in range(0, len(u32), 16):
        L.append(".long " + ",".join(hex(int(x)) for x in u32[i:i+16]))
    return "\n".join(L) + "\n"

CF_LDS = 36880
def colfilter(k, xin, xout, ssq, sid=2, zero_ssq2=False, pfgp=True):
    TAB, DATA, EXC, MX = 0, 20480, 28672, 36864
    XR, XI, SS, WTr = 8, 12, 16, 24
    C1, S1, C2, S2 = 32, 40, 48, 56
    DF = 64; T1 = 96; T4 = 120; T32 = 168; AC1 = 192; AC2 = 208; PB = 224; WF = 232
    stp = Stamper(k); stp("start")
    k("s_load_dwordx2 s[4:5], s[0:1], 64")
    k("v_lshrrev_b32 v4, 6, v0")
    k("v_and_b32 v5, 63, v0")
    k("v_readfirstlane_b32 s22, v4")
    k("v_lshlrev_b32 v1, 4, v5")
    k("v_bfe_u32 v2, v0, 4, 2")
    k("v_and_b32 v3, 15, v0")
    getpc(k, 26, ".Ltabcf")
    srd(k, 8, 26, 0, 20480)
    k("s_mul_i32 s23, s22, 5120")
    k("s_mov_b32 m0, s23")
    for f in range(4): k(f"buffer_load_dwordx4 v1, s[8:11], m0 offen offset:{f*1024} lds")
    k("s_add_u32 m0, s23, 4096")
    k("buffer_load_dwordx4 v1, s[8:11], m0 offen lds")
    k("s_and_b32 s24, s22, 1"); k("s_lshr_b32 s25, s22, 1")
    k("s_lshl_b32 s26, s24, 11"); k("s_lshl_b32 s27, s25, 10"); k("s_add_u32 s26, s26, s27")
    k(f"s_lshl_b32 s27, s{sid}, 13")
    k("s_add_u32 s28, s27, s26")
    k(f"s_add_u32 s29, s28, {xin}"); k(f"s_add_u32 s30, s28, {xout}")
    k(f"s_add_u32 s34, s29, 4096"); k(f"s_add_u32 s35, s30, 4096")
    k("s_lshl_b32 s31, s26, 1"); k(f"s_add_u32 s31, s31, {ssq}")
    k("s_lshl_b32 s32, s22, 11"); k("s_add_u32 s32, s32, s27"); k(f"s_add_u32 s32, s32, {WT}")
    k("v_lshlrev_b32 v6, 1, v1")
    k("s_waitcnt lgkmcnt(0)")
    stp("karg")
    srd(k, 12, 4, 0, WS_END)
    k(f"buffer_load_dwordx4 {vr(XR,4)}, v1, s[12:15], s29 offen")
    k(f"buffer_load_dwordx4 {vr(XI,4)}, v1, s[12:15], s34 offen")
    k(f"buffer_load_dwordx4 {vr(SS,4)}, v6, s[12:15], s31 offen")
    k(f"buffer_load_dwordx4 {vr(SS+4,4)}, v6, s[12:15], s31 offen offset:16")
    k(f"buffer_load_dwordx4 {vr(WTr,4)}, v6, s[12:15], s32 offen")
    k(f"buffer_load_dwordx4 {vr(WTr+4,4)}, v6, s[12:15], s32 offen offset:16")
    k("s_lshl_b32 s33, s22, 4")
    k("v_add_u32 v4, s33, v3"); k("v_cvt_f32_u32 v4, v4"); k(f"v_mul_f32 v4, {f32hex(1/2048)}, v4")
    k("v_lshlrev_b32 v5, 2, v2"); k("v_cvt_f32_u32 v7, v5")
    k(f"v_mul_f32 v{S1}, v4, v7")
    for r in range(1, 4): k(f"v_add_f32 v{S1+r}, v{S1+r-1}, v4")
    k(f"v_mul_f32 v4, {f32hex(16.0)}, v4")
    for r in range(4): k(f"v_add_f32 v{S1+4+r}, v{S1+r}, v4")
    k("v_add_u32 v5, s33, v5"); k("v_cvt_f32_u32 v5, v5")
    k("v_cvt_f32_u32 v4, v3"); k(f"v_mul_f32 v4, {f32hex(1/2048)}, v4")
    k(f"v_add_f32 v7, {f32hex(16/2048)}, v4")
    k(f"v_mul_f32 v{S2}, v4, v5"); k(f"v_mul_f32 v{S2+4}, v7, v5")
    for r in range(1, 4):
        k(f"v_add_f32 v{S2+r}, v{S2+r-1}, v4"); k(f"v_add_f32 v{S2+4+r}, v{S2+4+r-1}, v7")
    for r in range(8):
        k(f"v_cos_f32 v{C1+r}, v{S1+r}"); k(f"v_sin_f32 v{S1+r}, v{S1+r}")
    for r in range(8):
        k(f"v_cos_f32 v{C2+r}, v{S2+r}"); k(f"v_sin_f32 v{S2+r}, v{S2+r}")
    k(f"s_lshl_b32 s36, s24, 12"); k("s_lshl_b32 s37, s25, 11"); k("s_add_u32 s36, s36, s37")
    k("v_add_u32 v4, s36, v1")
    k(f"v_mov_b32 v7, {f32hex(1e-5)}")
    stp("tw"); k("s_waitcnt vmcnt(2)"); stp("ld")
    for e in range(8): k(f"v_fmamk_f32 v{SS+e}, v{SS+e}, {f32hex(1/640)}, v7")
    for e in range(8): k(f"v_rsq_f32 v{SS+e}, v{SS+e}")
    for ri, X in ((0, XR), (1, XI)):
        for q in range(4):
            k(f"v_lshlrev_b32 v{WF+2*q}, 16, v{X+q}"); k(f"v_and_b32 v{WF+2*q+1}, 0xffff0000, v{X+q}")
        for q in range(4):
            k(f"v_fma_mixlo_f16 v{PB+4*ri+q}, v{WF+2*q}, v{SS+2*q}, 0")
        for q in range(4):
            k(f"v_fma_mixhi_f16 v{PB+4*ri+q}, v{WF+2*q+1}, v{SS+2*q+1}, 0")
        k(f"ds_write_b128 v4, {vr(PB+4*ri,4)} offset:{DATA+ri*1024}")
    k("s_waitcnt vmcnt(0)")
    k(f"s_and_b32 s40, s{sid}, 1"); k("s_mul_i32 s40, s40, 1310720"); k(f"s_lshr_b32 s41, s{sid}, 3"); k("s_lshl_b32 s41, s41, 15")
    k("s_add_u32 s40, s40, s41"); k(f"s_add_u32 s40, s40, {GP}"); k("v_lshlrev_b32 v248, 7, v0")
    if pfgp: k("buffer_load_dword v249, v248, s[12:15], s40 offen")
    for x in pf_text(sid, 256, 44, 248, 250)[0]: k(x)
    for e in range(8):
        k(f"v_lshlrev_b32 v{WF+2*e}, 16, v{WTr+e}"); k(f"v_and_b32 v{WF+2*e+1}, 0xffff0000, v{WTr+e}")
    k(f"v_max_f32 v5, |v{WF}|, |v{WF+1}|")
    for e in range(1, 8): k(f"v_max3_f32 v5, |v{WF+2*e}|, |v{WF+2*e+1}|, v5")
    for sh in (8, 4, 2, 1): k(f"v_max_f32_dpp v5, v5, v5 row_ror:{sh} row_mask:0xf bank_mask:0xf")
    k("s_lshl_b32 s37, s22, 4"); k("v_lshl_add_u32 v7, v2, 2, s37")
    k(f"ds_write_b32 v7, v5 offset:{EXC}")
    k("s_lshl_b32 s37, s22, 12"); k("v_add_u32 v5, s37, v1")
    k("s_lshl_b32 s37, s25, 13"); k("v_add_u32 v7, s37, v1")
    k("v_mov_b32 v6, 0")
    k("s_waitcnt lgkmcnt(0)"); k("s_barrier")
    stp("bar1")
    for st in range(2):
        for ri in range(2): k(f"ds_read_b128 {vr(T1+12*st+4*ri,4)}, v5 offset:{TAB+st*2048+ri*1024}")
    for ta in range(2):
        for st in range(2):
            for ri in range(2): k(f"ds_read_b128 {vr(DF+16*ta+8*st+4*ri,4)}, v1 offset:{DATA+(ta*2+st)*2048+ri*1024}")
    for q in range(4): k(f"ds_read_b128 {vr(AC2+4*q,4)}, v6 offset:{EXC+16*q}")
    for t in range(2):
        for ri in range(2): k(f"ds_read_b128 {vr(T32+12*t+4*ri,4)}, v1 offset:{TAB+16384+t*2048+ri*1024}")
    k("s_waitcnt lgkmcnt(12)")
    for st in range(2):
        for q in range(4): k(f"v_xor_b32 v{T1+12*st+8+q}, 0x80008000, v{T1+12*st+4+q}")
    def mf(d, a, b, first): k(f"v_mfma_f32_16x16x32_f16 {vr(d,4)}, {vr(a,4)}, {vr(b,4)}, {'0' if first else vr(d,4)}")
    for ta in range(2):
        if ta == 1: k("s_waitcnt lgkmcnt(8)")
        for st in range(2):
            xr = DF+16*ta+8*st; xi = xr+4; wr = T1+12*st; wi = wr+4; wn = wr+8
            mf(AC1+8*ta, xr, wr, st == 0); mf(AC1+8*ta+4, xr, wi, st == 0)
            mf(AC1+8*ta, xi, wn, False); mf(AC1+8*ta+4, xi, wr, False)
    k("s_waitcnt lgkmcnt(4)")
    k(f"v_max3_f32 v4, v{AC2}, v{AC2+1}, v{AC2+2}")
    for q in range(3, 15, 2): k(f"v_max3_f32 v4, v{AC2+q}, v{AC2+q+1}, v4")
    k(f"v_max_f32 v4, v{AC2+15}, v4")
    k("v_frexp_exp_i32_f32 v4, v4")
    k("v_max_i32 v4, -100, v4"); k("v_min_i32 v4, 100, v4")
    k("v_ldexp_f32 v6, 1.0, v4")
    k("v_sub_u32 v4, 0, v4"); k("v_ldexp_f32 v4, 1.0, v4")
    for e in range(8): k(f"v_pk_mul_f32 {vr(WF+2*e,2)}, {vr(WF+2*e,2)}, v[4:5] op_sel_hi:[1,0]")
    for t in range(2):
        for st in range(2):
            for ri in range(2): k(f"ds_read_b128 {vr(T4+24*t+12*st+4*ri,4)}, v7 offset:{TAB+t*4096+st*2048+ri*1024}")
    k("s_waitcnt lgkmcnt(8)")
    for t in range(2):
        for q in range(4): k(f"v_xor_b32 v{T32+12*t+8+q}, 0x80008000, v{T32+12*t+4+q}")
    def cmul(dr, di, e, xr, xi, c, s, conj, t0, t1):
        m = 'lo' if e % 2 == 0 else 'hi'
        k(f"v_mul_f32 v{t0}, v{xr}, v{c}"); k(f"v_mul_f32 v{t1}, v{xi}, v{c}")
        k(f"v_fma_mix{m}_f16 v{dr+e//2}, {'' if conj else '-'}v{xi}, v{s}, v{t0}")
        k(f"v_fma_mix{m}_f16 v{di+e//2}, {'-' if conj else ''}v{xr}, v{s}, v{t1}")
    TT = SS
    for e in range(8):
        ta, r = e >> 2, e & 3
        cmul(PB, PB+4, e, AC1+8*ta+r, AC1+8*ta+4+r, C1+e, S1+e, True, TT+2*(e % 4), TT+2*(e % 4)+1)
    for u in range(2):
        wr = T32+12*u; wi = wr+4; wn = wr+8
        mf(AC2+8*u, wr, PB, True); mf(AC2+8*u+4, wi, PB, True)
        mf(AC2+8*u, wn, PB+4, False); mf(AC2+8*u+4, wr, PB+4, False)
    k("s_waitcnt lgkmcnt(0)")
    for t in range(2):
        for st in range(2):
            for q in range(4): k(f"v_xor_b32 v{T4+24*t+12*st+8+q}, 0x80008000, v{T4+24*t+12*st+4+q}")
    PB2 = DF+16
    for e in range(8):
        u, r = e >> 2, e & 3
        cmul(PB2, PB2+4, e, AC2+8*u+r, AC2+8*u+4+r, WF+2*e, WF+2*e+1, False, TT+2*(e % 4), TT+2*(e % 4)+1)
    for ta in range(2):
        wr = T32+12*ta; wi = wr+4; wn = wr+8
        mf(AC1+8*ta, PB2, wr, True); mf(AC1+8*ta+4, PB2, wn, True)
        mf(AC1+8*ta, PB2+4, wi, False); mf(AC1+8*ta+4, PB2+4, wr, False)
    k("s_lshl_b32 s36, s25, 10"); k("s_lshl_b32 s37, s24, 3"); k("s_add_u32 s36, s36, s37")
    k("v_add_u32 v4, s36, v1")
    k("s_lshl_b32 s36, s24, 12"); k("v_add_u32 v5, s36, v1")
    stp("s3"); k("s_barrier")
    for e in range(8):
        ta, r = e >> 2, e & 3
        cmul(PB+2*ta, PB+4+2*ta, r, AC1+8*ta+r, AC1+8*ta+4+r, C2+e, S2+e, False, TT+2*(e % 4), TT+2*(e % 4)+1)
        if r == 3:
            k(f"ds_write_b64 v4, {vr(PB+2*ta,2)} offset:{EXC+ta*4096}")
            k(f"ds_write_b64 v4, {vr(PB+4+2*ta,2)} offset:{EXC+ta*4096+2048}")
    for ri, X in ((0, XR), (1, XI)):
        for q in range(4):
            k(f"v_lshlrev_b32 v{WF+8*ri+2*q}, 16, v{X+q}"); k(f"v_and_b32 v{WF+8*ri+2*q+1}, 0xffff0000, v{X+q}")
    k(f"s_cmp_eq_u32 s{sid}, 0"); k("s_cselect_b32 s36, 0, 1.0"); k("v_mul_f32 v7, s36, v6")
    k("s_waitcnt lgkmcnt(0)"); k("s_barrier")
    stp("bar3")
    for st in range(2):
        for ri in range(2): k(f"ds_read_b128 {vr(DF+8*st+4*ri,4)}, v5 offset:{EXC+ri*2048+st*1024}")
    for st in range(2):
        k(f"s_waitcnt lgkmcnt({2-2*st})")
        sr_, si = DF+8*st, DF+8*st+4
        for u in range(2):
            wr = T4+24*u+12*st; wi = wr+4; wn = wr+8
            mf(AC2+8*u, wr, sr_, st == 0); mf(AC2+8*u+4, wr, si, st == 0)
            mf(AC2+8*u, wi, si, False); mf(AC2+8*u+4, wn, sr_, False)
    for ri in range(2):
        for e in range(8):
            u, r = e >> 2, e & 3
            k(f"v_fmac_f32 v{WF+8*ri+e}, v{AC2+8*u+4*ri+r}, v{6+ri}")
        for q in range(4): k(f"v_cvt_pk_bf16_f32 v{PB+4*ri+q}, v{WF+8*ri+2*q}, v{WF+8*ri+2*q+1}")
        k(f"buffer_store_dwordx4 {vr(PB+4*ri,4)}, v1, s[12:15], s{30 if ri == 0 else 35} offen sc1")
    if zero_ssq2:
        lz = k.lab('z')
        k(f"s_cmp_ge_u32 s{sid}, 2"); k(f"s_cbranch_scc1 {lz}")
        for q in range(4): k(f"v_mov_b32 v{8+q}, 0")
        k("v_lshlrev_b32 v4, 4, v0")
        k(f"s_lshl_b32 s36, s{sid}, 12"); k(f"s_add_u32 s36, s36, {SSQ2}")
        k("buffer_store_dwordx4 v[8:11], v4, s[12:15], s36 offen")
        k(f"{lz}:")
    stp("st"); stp.flush()
    k("s_endpgm")

def wtpack(k, sid=2, touch=True):
    stp = Stamper(k); stp("start")
    k("s_load_dwordx4 s[4:7], s[0:1], 8")
    k("s_load_dwordx2 s[20:21], s[0:1], 64")
    k("s_load_dwordx2 s[30:31], s[0:1], 32")
    k("v_lshrrev_b32 v1, 6, v0"); k("v_and_b32 v2, 63, v0")
    k("v_readfirstlane_b32 s22, v1")
    k(f"s_lshr_b32 s23, s{sid}, 5")
    k(f"s_bfe_u32 s24, s{sid}, 0x20002")
    k(f"s_and_b32 s25, s{sid}, 3")
    k(f"s_bfe_u32 s36, s{sid}, 0x10004")
    k("s_lshl_b32 s26, s23, 6"); k("v_add_u32 v3, s26, v2")
    k("v_cmp_eq_u32 vcc, 0, v3"); k("v_mov_b32 v5, 320"); k("v_cndmask_b32 v4, v3, v5, vcc"); k("v_lshlrev_b32 v4, 1, v4")
    k("s_lshl_b32 s26, s25, 8"); k("s_lshl_b32 s27, s24, 4"); k("s_add_u32 s26, s26, s27"); k("s_lshl_b32 s27, s22, 1"); k("s_add_u32 s26, s26, s27")
    k("s_lshl_b32 s27, s36, 3"); k("s_add_u32 s26, s26, s27")
    k("s_mul_i32 s26, s26, 642")
    k("s_waitcnt lgkmcnt(0)")
    srd(k, 8, 4, 0, 2048*642); srd(k, 12, 6, 0, 2048*642)
    for e in range(8):
        u, r = e >> 2, e & 3
        k(f"s_add_u32 s29, s26, {642*64*(16*u+r)}")
        for dl in range(2):
            k(f"buffer_load_ushort v{8+8*dl+e}, v4, s[8:11], s29 offen offset:{642*dl}")
            k(f"buffer_load_ushort v{40+8*dl+e}, v4, s[12:15], s29 offen offset:{642*dl}")
    stp("issued")
    k("s_lshl_b32 s28, s24, 11"); k("s_lshl_b32 s27, s25, 9"); k("s_add_u32 s28, s28, s27"); k("s_lshl_b32 s27, s36, 8"); k("s_add_u32 s28, s28, s27")
    k("s_lshl_b32 s27, s23, 19"); k("s_add_u32 s28, s28, s27"); k("s_lshl_b32 s27, s22, 17"); k("s_add_u32 s28, s28, s27")
    k(f"s_add_u32 s28, s28, {WT}")
    srd(k, 16, 20, 0, WS_END)
    k("v_and_b32 v5, 15, v2"); k("s_lshl_b32 s27, s22, 2"); k("v_xor_b32 v6, s27, v5"); k("v_lshlrev_b32 v6, 4, v6"); k("v_lshl_add_u32 v24, v2, 8, v6")
    for q in range(1, 4): k(f"v_xor_b32 v{24+q}, {16*q}, v24")
    k("v_lshrrev_b32 v6, 4, v2"); k("v_xor_b32 v7, v5, v6"); k("v_lshlrev_b32 v7, 4, v7"); k("v_lshl_add_u32 v7, v6, 8, v7")
    k("s_lshl_b32 s27, s22, 12"); k("v_add_u32 v28, s27, v7")
    for q in range(1, 4): k(f"v_xor_b32 v{28+q}, {64*q}, v28")
    k("v_lshlrev_b32 v3, 13, v6"); k("v_lshl_add_u32 v3, v5, 4, v3")
    srd(k, 32, 30, 0, 640*3840)
    k(f"s_lshr_b32 s36, s{sid}, 3"); k("s_mul_i32 s36, s36, 32*3840"); k(f"s_and_b32 s37, s{sid}, 7"); k("s_lshl_b32 s38, s22, 3"); k("s_add_u32 s37, s37, s38")
    k("s_min_u32 s37, s37, 29"); k("s_lshl_b32 s37, s37, 7"); k("s_add_u32 s36, s36, s37"); k("v_and_b32 v5, 31, v2"); k("v_mul_u32_u24 v5, 3840, v5")
    k("s_waitcnt vmcnt(16)")
    for e in (0,1,2,3,8,9,10,11): k(f"v_lshl_or_b32 v{8+e}, v{40+e}, 16, v{8+e}")
    k("ds_write_b128 v24, v[8:11]"); k("ds_write_b128 v26, v[16:19]")
    k("s_waitcnt vmcnt(0)")
    for e in (4,5,6,7,12,13,14,15): k(f"v_lshl_or_b32 v{8+e}, v{40+e}, 16, v{8+e}")
    k("ds_write_b128 v25, v[12:15]"); k("ds_write_b128 v27, v[20:23]")
    k("s_waitcnt lgkmcnt(0)"); stp("ld"); k("s_barrier")
    for q in range(4): k(f"ds_read_b128 {vr(8+4*q,4)}, v{28+q} offset:{1024*q}")
    for q in range(4):
        k(f"s_waitcnt lgkmcnt({3-q})")
        k(f"buffer_store_dwordx4 {vr(8+4*q,4)}, v3, s[16:19], s28 offen sc1")
        if q < 3: k("s_add_u32 s28, s28, 32768")
    if touch: k("buffer_load_dword v6, v5, s[32:35], s36 offen")
    stp("st"); stp.flush()
    k("s_endpgm")

def wtpack4(k, sid=2):
    stp = Stamper(k); stp("start")
    k("s_load_dwordx4 s[4:7], s[0:1], 8")
    k("s_load_dwordx2 s[20:21], s[0:1], 64")
    k("v_lshrrev_b32 v1, 6, v0"); k("v_and_b32 v2, 63, v0")
    k("v_readfirstlane_b32 s22, v1")
    k(f"s_lshr_b32 s23, s{sid}, 4")
    k(f"s_bfe_u32 s24, s{sid}, 0x20002")
    k(f"s_and_b32 s25, s{sid}, 3")
    k("s_lshl_b32 s26, s23, 6"); k("v_add_u32 v3, s26, v2")
    k("v_cmp_eq_u32 vcc, 0, v3"); k("v_mov_b32 v5, 320"); k("v_cndmask_b32 v4, v3, v5, vcc"); k("v_lshlrev_b32 v4, 1, v4")
    k("s_lshl_b32 s26, s25, 8"); k("s_lshl_b32 s27, s24, 4"); k("s_add_u32 s26, s26, s27"); k("s_lshl_b32 s27, s22, 2"); k("s_add_u32 s26, s26, s27")
    k("s_mul_i32 s26, s26, 642")
    k("s_waitcnt lgkmcnt(0)")
    srd(k, 8, 4, 0, 2048*642); srd(k, 12, 6, 0, 2048*642)
    for e in range(8):
        u, r = e >> 2, e & 3
        k(f"s_add_u32 s29, s26, {642*64*(16*u+r)}")
        for dl in range(4):
            k(f"buffer_load_ushort v{8+8*dl+e}, v4, s[8:11], s29 offen offset:{642*dl}")
            k(f"buffer_load_ushort v{40+8*dl+e}, v4, s[12:15], s29 offen offset:{642*dl}")
    stp("issued")
    k("s_lshl_b32 s28, s24, 11"); k("s_lshl_b32 s27, s25, 9"); k("s_add_u32 s28, s28, s27")
    k("s_lshl_b32 s27, s23, 19"); k("s_add_u32 s28, s28, s27"); k("s_lshl_b32 s27, s22, 17"); k("s_add_u32 s28, s28, s27")
    k(f"s_add_u32 s28, s28, {WT}")
    srd(k, 16, 20, 0, WS_END)
    k("v_and_b32 v5, 15, v2"); k("s_lshl_b32 s27, s22, 3"); k("v_xor_b32 v6, s27, v5"); k("v_lshlrev_b32 v6, 4, v6"); k("v_lshl_add_u32 v72, v2, 9, v6")
    for q in range(1, 8): k(f"v_xor_b32 v{72+q}, {16*q}, v72")
    k("v_lshrrev_b32 v6, 5, v2"); k("v_and_b32 v5, 31, v2"); k("v_xor_b32 v7, v5, v6"); k("v_lshlrev_b32 v7, 4, v7"); k("v_lshl_add_u32 v7, v6, 9, v7")
    k("s_lshl_b32 s27, s22, 13"); k("v_add_u32 v80, s27, v7")
    for q in range(1, 8): k(f"v_xor_b32 v{80+q}, {32*q}, v80")
    k("v_lshlrev_b32 v3, 13, v6"); k("v_lshl_add_u32 v3, v5, 4, v3")
    for h in range(2):
        k(f"s_waitcnt vmcnt({32-32*h})")
        for dl in range(4):
            for e in range(4*h, 4*h+4): k(f"v_lshl_or_b32 v{8+8*dl+e}, v{40+8*dl+e}, 16, v{8+8*dl+e}")
            k(f"ds_write_b128 v{72+2*dl+h}, {vr(8+8*dl+4*h,4)}")
    k("s_waitcnt lgkmcnt(0)"); stp("ld"); k("s_barrier")
    for q in range(8): k(f"ds_read_b128 {vr(8+4*q,4)}, v{80+q} offset:{1024*q}")
    for q in range(8):
        k(f"s_waitcnt lgkmcnt({7-q})")
        k(f"buffer_store_dwordx4 {vr(8+4*q,4)}, v3, s[16:19], s28 offen sc1")
        if q < 7: k("s_add_u32 s28, s28, 16384")
    stp("st"); stp.flush()
    k("s_endpgm")
```

```python
import numpy as np
from asmlib import *
from layout import *
from gen import getpc, srd, n1_of_p, Stamper, pf_code
def f32hex(x): return hex(int(np.float32(x).view(np.uint32)))

class VM:
    def __init__(self): self.tags = []
    def issue(self, tag): self.tags.append(tag)
    def wait(self, pred):
        last = -1
        for i, t in enumerate(self.tags):
            if pred(t): last = i
        return len(self.tags) - 1 - last

EA_R = 4
EA_LDS = EA_R*20480
P4_LDS = EA_LDS+10240
def engineA2(k, mode, sid=2, PD=2, hook=None, rotate=True):
    R = EA_R
    fin = mode == 'fin'
    NC = 10 if fin else 5
    aoff = {'p0': 0, 'p4': 64, 'wop': 40, 'fin': 48}[mode]
    stp = Stamper(k); stp("start")
    k(f"s_load_dwordx2 s[4:5], s[0:1], {aoff}")
    k(f"s_load_dwordx2 s[6:7], s[0:1], 64")
    if mode == 'p0':
        lp = k.lab('pf'); k(f"s_cmp_ge_u32 s{sid}, 16"); k(f"s_cbranch_scc1 {lp}")
        pf_code(k, 256, 44, 180, 181); k(f"{lp}:")
    if mode == 'wop':
        k(f"s_and_b32 s20, s{sid}, 7"); k("s_mul_i32 s20, s20, 10"); k(f"s_lshr_b32 s21, s{sid}, 3"); k("s_add_u32 s21, s21, s20")
        k("s_lshr_b32 s20, s21, 3"); k("s_and_b32 s21, s21, 7")
    else:
        k(f"s_and_b32 s24, s{sid}, 7"); k(f"s_bfe_u32 s25, s{sid}, 0x20003")
        k("s_lshl_b32 s20, s24, 2"); k("s_add_u32 s20, s20, s25"); k(f"s_lshr_b32 s21, s{sid}, 5")
    k("v_lshrrev_b32 v1, 6, v0"); k("v_and_b32 v2, 63, v0")
    k("v_readfirstlane_b32 s22, v1")
    k("v_and_b32 v3, 15, v0"); k("v_bfe_u32 v4, v0, 4, 2"); k("v_lshlrev_b32 v5, 4, v2")
    k("s_mul_i32 s24, s21, 102400"); k("s_mul_i32 s23, s22, 5120")
    k("s_add_u32 s37, s20, s21"); k("s_mul_i32 s38, s37, 205"); k("s_lshr_b32 s38, s38, 10"); k("s_mul_i32 s38, s38, 5"); k("s_sub_u32 s37, s37, s38")
    if not rotate: k("s_mov_b32 s37, 0")
    k("s_mov_b32 s38, s37")
    NA = PD+1
    VA = 16; VB = VA+16*NA; VD = VB+60; VG = VD+20; VS = VG+4; VONE = VS+4; VRES = VONE+4
    vm = VM()
    def rot(r, c): return [] if c % 5 == 0 and c < 5 else [f"s_add_u32 s{r}, s{r}, 1", f"s_cmp_eq_u32 s{r}, 5", f"s_cselect_b32 s{r}, 0, s{r}"]
    def dma(c):
        sw = "s[8:11]" if c < 5 else "s[32:35]"
        sl = c % R
        L = [rot(37, c) + ["s_mul_i32 s36, s37, 20480", "s_add_u32 s36, s36, s23", f"s_add_u32 m0, s23, {sl*20480}", f"buffer_load_dwordx4 v5, {sw}, s36 offen lds"]]
        for f in range(1, 4): L.append([f"buffer_load_dwordx4 v5, {sw}, s36 offen offset:{f*1024} lds"])
        L.append([f"s_add_u32 m0, s23, {sl*20480+4096}", f"s_add_u32 s36, s36, 4096", f"buffer_load_dwordx4 v5, {sw}, s36 offen lds"])
        return [((c, 'd'), l) for l in L]
    def aload(c):
        L = []
        for s in range(4*c, 4*c+4):
            d = vr(VA+16*(c % NA)+4*(s % 4), 4)
            if mode in ('p4', 'fin'):
                base = (AFX if s < 20 else AFO) if fin else AFO
                pre = []
                if s % 4 == 0: pre = rot(38, c) + ["s_lshl_b32 s27, s38, 13", f"s_add_u32 s27, s27, {base}"]
                if s % 4 == 2: pre = ["s_add_u32 s27, s27, 4096"]
                L.append(pre + [f"buffer_load_dwordx4 {d}, v7, s[12:15], s27 offen offset:{(s % 2)*2048}"])
            else:
                pre = rot(38, c) + ["s_lshl_b32 s27, s38, 8"] if s % 4 == 0 else []
                L.append(pre + [f"buffer_load_dwordx4 {d}, v7, s[12:15], s27 offen offset:{(s % 4)*64}"])
        return [((c, 'a'), l) for l in L]
    def emit(e):
        for x in e[1]: k(x)
        vm.issue(e[0])
    static_b = mode != 'p4'
    if static_b:
        getpc(k, 26, ".Ltab3" if fin else ".Ltab1")
        srd(k, 8, 26, "s24", 102400)
        for c in range(PD):
            for e in dma(c): emit(e)
    k("s_lshl_b32 s25, s20, 6"); k("s_lshl_b32 s26, s22, 4"); k("s_add_u32 s25, s25, s26")
    k("v_add_u32 v6, s25, v3")
    if mode == 'p0':
        n1_of_p(k, 7, 6, 8, 9)
        k("v_mul_u32_u24 v7, 1280, v7"); k("v_lshl_add_u32 v7, v4, 4, v7")
    elif mode in ('p4', 'fin'):
        k("v_lshrrev_b32 v7, 5, v6"); k("v_mul_u32_u24 v7, 40960, v7"); k("v_lshl_add_u32 v7, v4, 9, v7")
        k("v_and_b32 v8, 31, v6"); k("v_lshl_add_u32 v7, v8, 4, v7")
    else:
        k("v_lshrrev_b32 v8, 4, v6"); k("v_mul_u32_u24 v8, 20, v8")
        k("v_and_b32 v9, 3, v6"); k("v_add_u32 v8, v8, v9")
        k("v_bfe_u32 v10, v6, 3, 1"); k("v_lshl_add_u32 v8, v10, 2, v8")
        k("v_bfe_u32 v10, v6, 2, 1"); k("v_lshl_add_u32 v8, v10, 3, v8")
        k("v_subrev_u32 v10, 512, v6"); k("v_lshrrev_b32 v10, 2, v10")
        k("v_mul_u32_u24 v10, 20, v10"); k("v_add3_u32 v10, v10, v9, 16")
        k("v_cmp_gt_u32 vcc, 512, v6"); k("v_cndmask_b32 v7, v10, v8, vcc")
        k("v_mul_u32_u24 v7, 1280, v7"); k("v_lshl_add_u32 v7, v4, 4, v7")
    if mode in ('p0', 'wop'):
        for r in range(4): k(f"v_mov_b32 v{VONE+r}, 0x3f803f80")
    if fin:
        n1_of_p(k, 10, 6, 8, 9)
        k("v_mul_u32_u24 v10, 1280, v10"); k("v_lshl_add_u32 v12, v4, 3, v10"); k("v_lshl_add_u32 v10, v4, 4, v10")
        k("v_lshlrev_b32 v13, 2, v6")
    elif mode == 'p4':
        k("v_lshrrev_b32 v1, 3, v2"); k("v_xor_b32 v8, v1, v2"); k("v_and_b32 v8, 7, v8"); k("v_lshlrev_b32 v10, 12, v1"); k("v_lshl_add_u32 v10, v8, 4, v10")
        k("v_lshrrev_b32 v8, 1, v4"); k("v_lshl_add_u32 v8, s22, 1, v8"); k("v_xor_b32 v8, v8, v3"); k("v_and_b32 v8, 7, v8"); k("v_lshl_add_u32 v8, v3, 3, v8")
        k("v_and_b32 v9, 1, v4"); k("v_lshl_add_u32 v8, v8, 1, v9"); k(f"s_mov_b32 s39, {EA_LDS}"); k("v_lshl_add_u32 v12, v8, 3, s39")
        k("s_lshl_b32 s40, s22, 10"); k("s_add_u32 s39, s39, s40"); k("v_add_u32 v13, s39, v5")
    else:
        k("v_lshlrev_b32 v10, 12, v3"); k("v_lshl_add_u32 v10, v4, 3, v10")
    k("v_add_u32 v11, 0x10000, v5")
    k("s_waitcnt lgkmcnt(0)"); stp("karg")
    if mode in ('p4', 'fin'):
        srd(k, 12, 6, 0, WS_END)
        k(f"s_add_u32 s24, s24, {WOT if fin else WOP}")
        srd(k, 32 if fin else 8, 6, "s24", 102400)
        if fin:
            k(f"s_and_b32 s40, s{sid}, 7"); k("s_mul_i32 s40, s40, 327680"); k(f"s_lshr_b32 s41, s{sid}, 3"); k("s_mul_i32 s41, s41, 10240")
            k("s_add_u32 s40, s40, s41"); k(f"s_add_u32 s40, s40, {AFO}")
            k("v_lshlrev_b32 v180, 7, v0"); k("v_min_u32 v180, 10112, v180")
            emit((97, ["buffer_load_dword v181, v180, s[12:15], s40 offen"]))
    else:
        srd(k, 12, 4, 0, 2048*1280 if mode == 'p0' else 640*1280)
    for c in range(PD):
        if not static_b:
            for e in dma(c): emit(e)
        for e in aload(c): emit(e)
    extra = []
    if mode == 'p4':
        k("s_mul_i32 s28, s21, 80*4096"); k("s_lshl_b32 s29, s20, 7"); k("s_add_u32 s28, s28, s29"); k("s_lshl_b32 s29, s22, 15"); k("s_add_u32 s28, s28, s29")
        k("s_and_b32 s40, s22, 1"); k("s_sub_u32 s40, s40, s22"); k("s_add_u32 s40, s40, 8")
        k("s_lshl_b32 s41, s40, 15"); k("s_lshl_b32 s40, s40, 10")
        for q in range(3):
            emit((99, [f"s_add_u32 s29, s28, {XB+q*131072}" if q < 2 else f"s_add_u32 s29, s28, {XB}\ns_add_u32 s29, s29, s41",
                       f"s_add_u32 m0, s39, {q*4096}" if q < 2 else "s_add_u32 m0, s39, s40", "buffer_load_dwordx4 v10, s[12:15], s29 offen lds"]))
    else:
        k("s_mul_i32 s28, s21, 80*4096"); k("s_lshl_b32 s29, s25, 1"); k("s_add_u32 s28, s28, s29")
    if fin:
        extra.append((99, [f"s_mov_b32 s29, {DC0}", f"buffer_load_dword v{VRES}, v13, s[12:15], s29 offen"]))
        extra.append((99, [f"s_mov_b32 s29, {DCD}", f"buffer_load_dword v{VRES+1}, v13, s[12:15], s29 offen"]))
    if hook: extra += [(98, h) for h in hook(k)]
    def breads(s):
        L = []
        for jl in range(5):
            o = ((s//4) % R)*20480+(s % 4)*5120+jl*1024
            L.append(f"ds_read_b128 {vr(VB+20*(s % 3)+4*jl,4)}, v{5 if o < 65536 else 11} offset:{o % 65536}")
        return L
    def nextloads(c):
        if c < NC: return dma(c) + aload(c)
        if c == NC: return extra
        return []
    stp("issued")
    k(f"s_waitcnt vmcnt({vm.wait(lambda t: t == (0, 'd'))})"); k("s_barrier"); stp("c0")
    for x in breads(0) + breads(1): k(x)
    pend = nextloads(PD)
    NS = 4*NC
    for s in range(NS):
        c, st = s // 4, s % 4
        nxt = breads(s+2) if s+2 < NS else []
        a = vr(VA+16*(c % NA)+4*st, 4)
        if mode == 'p4' and s+2 == NS:
            for jl in range(5): k(f"ds_read_b64 {vr(VRES+2*jl,2)}, v12 offset:{jl*2048}")
        for jl in range(5):
            lg = 9 if nxt else (9 if s+2 == NS else 4) - jl + (5 if mode == 'p4' else 0)
            vw = f"vmcnt({vm.wait(lambda t: t == (c, 'a'))}) " if (st, jl) == (0, 0) else ""
            k(f"s_waitcnt {vw}lgkmcnt({lg})")
            b = vr(VB+20*(s % 3)+4*jl, 4)
            x, y = (b, a) if fin else (a, b)
            k(f"v_mfma_f32_16x16x32_bf16 {vr(VD+4*jl,4)}, {x}, {y}, {'0' if s == 0 else vr(VD+4*jl,4)}")
            if jl == 0 and st == 2 and c+1 < NC:
                for e in pend: emit(e)
                k(f"s_waitcnt vmcnt({vm.wait(lambda t: t == (c+1, 'd'))})"); k("s_barrier")
                if c in (0, 1, 2, 3, 5, 7): stp(f"c{c+1}")
                pend = nextloads(c+1+PD)
            if nxt: k(nxt[jl])
            if pend and (jl in (1, 3, 4) or s < 2): emit(pend.pop(0))
        if mode == 'p0': k(f"v_mfma_f32_16x16x32_bf16 {vr(VG,4)}, {a}, {a}, {'0' if s == 0 else vr(VG,4)}")
        if mode in ('p0', 'wop'): k(f"v_mfma_f32_16x16x32_bf16 {vr(VS,4)}, {a}, {vr(VONE,4)}, {'0' if s == 0 else vr(VS,4)}")
    for e in pend: emit(e)
    stp("loop")
    T = VA
    lend = k.lab('end')
    if fin:
        srd(k, 16, 4, 0, 2048*1280)
        k("s_mul_i32 s28, s21, 160")
        k("s_waitcnt vmcnt(0)")
        k(f"v_add_f32 v{VRES}, v{VRES}, v{VRES+1}")
        for r in range(20): k(f"v_add_f32 v{VD+r}, v{VD+r}, v{VRES}")
        for q in range(10): k(f"v_cvt_pk_bf16_f32 v{T+q}, v{VD+2*q}, v{VD+2*q+1}")
        k(f"buffer_store_dwordx4 {vr(T,4)}, v10, s[16:19], s28 offen")
        k(f"buffer_store_dwordx4 {vr(T+4,4)}, v10, s[16:19], s28 offen offset:64")
        k(f"buffer_store_dwordx2 {vr(T+8,2)}, v12, s[16:19], s28 offen offset:128")
    elif mode == 'p0':
        srd(k, 16, 6, XA, 0x280000)
        for jl in range(5):
            k(f"v_cvt_pk_bf16_f32 v{T+2*jl}, v{VD+4*jl}, v{VD+4*jl+1}")
            k(f"v_cvt_pk_bf16_f32 v{T+2*jl+1}, v{VD+4*jl+2}, v{VD+4*jl+3}")
            k(f"s_add_u32 s29, s28, {jl*65536}")
            k(f"buffer_store_dwordx2 {vr(T+2*jl,2)}, v10, s[16:19], s29 offen")
        k("s_cmp_lg_u32 s21, 0"); k(f"s_cbranch_scc1 {lend}")
        k("v_and_b32 v12, 3, v3")
        for r in range(1, 4):
            k(f"v_cmp_eq_u32 vcc, {r}, v12")
            k(f"v_cndmask_b32 v{VG}, v{VG}, v{VG+r}, vcc")
            k(f"v_cndmask_b32 v{VS}, v{VS}, v{VS+r}, vcc")
        k(f"v_mul_f32 v13, {f32hex(1/640)}, v{VS}")
        k(f"v_fma_f32 v14, -v13, v{VS}, v{VG}")
        k("v_max_f32 v14, 0, v14")
        k("v_lshrrev_b32 v12, 2, v3")
        k("v_cmp_eq_u32 vcc, v12, v4")
        k("v_lshlrev_b32 v15, 2, v6")
        srd(k, 16, 6, SSQ0, 0x8000)
        k("s_mov_b64 exec, vcc")
        k("buffer_store_dword v14, v15, s[16:19], 0 offen")
        k(f"s_movk_i32 s29, {DC0-SSQ0}")
        k("buffer_store_dword v13, v15, s[16:19], s29 offen")
    elif mode == 'wop':
        k("s_lshr_b32 s29, s25, 5"); k("s_mul_i32 s29, s29, 5120"); k("s_add_u32 s29, s29, s24")
        k("s_and_b32 s30, s22, 1"); k("s_lshl_b32 s30, s30, 9"); k("s_add_u32 s29, s29, s30")
        k("v_lshrrev_b32 v12, 1, v4"); k("v_lshlrev_b32 v12, 8, v12"); k("v_lshl_add_u32 v12, v3, 4, v12")
        k("v_and_b32 v13, 1, v4"); k("v_lshl_add_u32 v12, v13, 3, v12")
        srd(k, 16, 6, WOP, 819200)
        k("s_cmp_eq_u32 s21, 0"); k("s_cselect_b32 s30, 1, 99")
        k("v_cmp_eq_u32 vcc, s30, v3")
        for r in range(4):
            k(f"v_mul_f32 v{VS+r}, {f32hex(1/640)}, v{VS+r}")
            k(f"v_cndmask_b32 v{VD+r}, v{VD+r}, v{VS+r}, vcc")
        for jl in range(5):
            k(f"v_cvt_pk_bf16_f32 v{T+2*jl}, v{VD+4*jl}, v{VD+4*jl+1}")
            k(f"v_cvt_pk_bf16_f32 v{T+2*jl+1}, v{VD+4*jl+2}, v{VD+4*jl+3}")
            if jl == 4: k("s_add_u32 s29, s29, 4096")
            k(f"buffer_store_dwordx2 {vr(T+2*jl,2)}, v12, s[16:19], s29 offen offset:{(jl % 4)*1024}")
    else:
        k("s_waitcnt lgkmcnt(0)")
        k("s_cmp_eq_u32 s21, 0"); k("s_cselect_b32 s30, 1, 99")
        k("v_cmp_eq_u32 vcc, s30, v3")
        k("v_lshlrev_b32 v15, 4, v4"); k("s_lshl_b32 s31, s25, 2"); k(f"s_add_u32 s31, s31, {DCD}")
        lsk = k.lab('sk')
        k("s_cmp_lg_u32 s21, 0"); k(f"s_cbranch_scc1 {lsk}")
        k("s_mov_b64 exec, vcc")
        k(f"buffer_store_dwordx4 {vr(VD,4)}, v15, s[12:15], s31 offen")
        k("s_mov_b64 exec, -1")
        k(f"{lsk}:")
        for r in range(4): k(f"v_cndmask_b32 v{VD+r}, v{VD+r}, 0, vcc")
        for jl in range(5):
            for h in range(2):
                k(f"v_lshlrev_b32 v{T}, 16, v{VRES+2*jl+h}"); k(f"v_and_b32 v{T+1}, 0xffff0000, v{VRES+2*jl+h}")
                k(f"v_add_f32 v{VD+4*jl+2*h}, v{VD+4*jl+2*h}, v{T}"); k(f"v_add_f32 v{VD+4*jl+2*h+1}, v{VD+4*jl+2*h+1}, v{T+1}")
            k(f"v_cvt_pk_bf16_f32 v{T+4+2*jl}, v{VD+4*jl}, v{VD+4*jl+1}")
            k(f"v_cvt_pk_bf16_f32 v{T+4+2*jl+1}, v{VD+4*jl+2}, v{VD+4*jl+3}")
            k(f"ds_write_b64 v12, {vr(T+4+2*jl,2)} offset:{jl*2048}")
        for r in range(4): k(f"v_mul_f32 v{VG+r}, v{VD+r}, v{VD+r}")
        for jl in range(1, 5):
            for r in range(4): k(f"v_fmac_f32 v{VG+r}, v{VD+4*jl+r}, v{VD+4*jl+r}")
        k("s_waitcnt lgkmcnt(0)"); k("s_barrier")
        for q in range(2): k(f"ds_read_b128 {vr(T+4*q,4)}, v13 offset:{q*4096}")
        l3 = k.lab('q'); k("s_cmp_ge_u32 s22, 2"); k(f"s_cbranch_scc1 {l3}")
        k(f"ds_read_b128 {vr(T+8,4)}, v13 offset:8192"); k(f"s_add_u32 s29, s28, {XA+262144}"); k("s_waitcnt lgkmcnt(0)")
        k(f"buffer_store_dwordx4 {vr(T+8,4)}, v10, s[12:15], s29 offen sc1")
        k(f"{l3}:")
        k(f"s_add_u32 s29, s28, {XA+131072}")
        if XA: k(f"s_add_u32 s28, s28, {XA}")
        k("s_waitcnt lgkmcnt(1)"); k(f"buffer_store_dwordx4 {vr(T,4)}, v10, s[12:15], s28 offen sc1")
        k("s_waitcnt lgkmcnt(0)"); k(f"buffer_store_dwordx4 {vr(T+4,4)}, v10, s[12:15], s29 offen sc1")
        for sh in (8, 4, 2, 1):
            for r in range(4): k(f"v_add_f32_dpp v{VG+r}, v{VG+r}, v{VG+r} row_ror:{sh} row_mask:0xf bank_mask:0xf")
        for r in range(1, 4):
            k(f"v_cmp_eq_u32 vcc, {r}, v3")
            k(f"v_cndmask_b32 v{VG}, v{VG}, v{VG+r}, vcc")
        k("v_cmp_gt_u32 vcc, 4, v3")
        k("v_lshl_add_u32 v15, v3, 2, v15")
        k("s_lshl_b32 s31, s25, 2"); k(f"s_add_u32 s31, s31, {SSQ2}")
        k("s_mov_b64 exec, vcc")
        k(f"buffer_atomic_add_f32 v{VG}, v15, s[12:15], s31 offen")
    k(f"{lend}:")
    stp("st"); stp.flush()
    k("s_endpgm")

def wotpack(k, sid=2):
    k("s_load_dwordx2 s[4:5], s[0:1], 40")
    k("s_load_dwordx2 s[6:7], s[0:1], 64")
    k("v_lshrrev_b32 v1, 6, v0"); k("v_and_b32 v2, 63, v0")
    k("v_readfirstlane_b32 s22, v1")
    k(f"s_lshl_b32 s20, s{sid}, 2"); k("s_add_u32 s20, s20, s22")
    k("s_mul_i32 s21, s20, 3277"); k("s_lshr_b32 s21, s21, 16")
    k("s_mul_i32 s23, s21, 20"); k("s_sub_u32 s23, s20, s23")
    k("s_mul_i32 s24, s23, 40"); k("s_mul_i32 s25, s23, 160"); k(f"s_sub_u32 s25, s25, {160*16-16}")
    k("s_cmp_lt_u32 s23, 16")
    k("s_cselect_b32 s24, s24, s25"); k("s_cselect_b32 s26, 20, 80"); k("s_cselect_b32 s27, 4, 40"); k("s_cselect_b32 s28, 8, 20")
    k("s_mul_i32 s24, s24, 1280"); k("s_mul_i32 s25, s21, 160"); k("s_add_u32 s24, s24, s25"); k("s_mul_i32 s28, s28, 1280")
    k("v_and_b32 v3, 15, v2"); k("v_lshrrev_b32 v4, 5, v2"); k("v_bfe_u32 v5, v2, 4, 1")
    k("v_mul_lo_u32 v4, v4, s26"); k("v_mul_lo_u32 v5, v5, s27"); k("v_add_u32 v4, v4, v5"); k("v_mul_u32_u24 v4, 1280, v4")
    k("v_lshl_add_u32 v6, v3, 1, v4")
    k("v_lshrrev_b32 v5, 2, v3"); k("v_lshl_add_u32 v4, v5, 4, v4"); k("v_and_b32 v5, 3, v3"); k("v_lshl_add_u32 v4, v5, 1, v4")
    k("v_lshlrev_b32 v7, 4, v2")
    k("s_mul_i32 s30, s20, 5120"); k(f"s_add_u32 s30, s30, {WOT}")
    k("s_waitcnt lgkmcnt(0)")
    srd(k, 8, 4, 0, 640*1280); srd(k, 12, 6, 0, WS_END)
    for e in range(8):
        if e == 4: k("s_add_u32 s24, s24, s28")
        k(f"s_add_u32 s29, s24, {(e & 3)*1280}")
        for jl in range(5):
            off = 128 if jl == 4 else 64*(jl >> 1) + 8*(jl & 1)
            k(f"buffer_load_ushort v{8+8*jl+e}, v{6 if jl == 4 else 4}, s[8:11], s29 offen offset:{off}")
    for q in range(4):
        k(f"s_waitcnt vmcnt({30-10*q})")
        for jl in range(5): k(f"v_lshl_or_b32 v{48+4*jl+q}, v{8+8*jl+2*q+1}, 16, v{8+8*jl+2*q}")
    for jl in range(5):
        if jl == 4: k("s_add_u32 s30, s30, 4096")
        k(f"buffer_store_dwordx4 {vr(48+4*jl,4)}, v7, s[12:15], s30 offen offset:{(jl % 4)*1024}")
    k("s_endpgm")
```

```python
import numpy as np
from asmlib import *
from layout import *
from gen import getpc, srd, n1_of_p, Stamper, pf_code
from ea import VM
from eb import div20, CS
def f32hex(x): return hex(int(np.float32(x).view(np.uint32)))
EG_LDS = 51200+4*6144
GG_LDS = 81920
SC = np.sqrt(2/640)

def gconst(k, vj, v8g, C, special):
    E = C+2
    k(f"v_lshrrev_b32 v{C}, 1, v{vj}")
    k(f"v_and_b32 v{C+1}, 1, v{vj}")
    if special >= 1:
        k(f"v_cmp_eq_u32 vcc, 0, v{vj}"); k(f"v_mov_b32 v{E}, 320"); k(f"v_cndmask_b32 v{C}, v{C}, v{E}, vcc")
    if special >= 2:
        k(f"v_cmp_eq_u32 vcc, 1, v{vj}"); k(f"v_cndmask_b32 v{C+1}, v{C+1}, 0, vcc")
    k(f"v_cvt_f32_u32 v{C}, v{C}"); k(f"v_cvt_f32_u32 v{C+1}, v{C+1}")
    k(f"v_mul_f32 v{C}, {f32hex(1/640)}, v{C}"); k(f"v_mul_f32 v{C+1}, 0x3e800000, v{C+1}")
    k(f"v_fmac_f32 v{C+1}, v{C}, v{v8g}")
    k(f"v_mov_b32 v{E}, 0"); k(f"v_mov_b32 v{E+1}, v{C}")
    for e in range(2, 8): k(f"v_mul_f32 v{E+e}, {f32hex(float(e))}, v{C}")

def gfrag(sn, C, T, O):
    L = [f"v_cvt_f32_u32 v{T+8}, s{sn}", f"v_fma_f32 v{T+8}, v{C}, v{T+8}, v{C+1}"]
    P = [f"v_pk_add_f32 {vr(T+2*q,2)}, {vr(C+2+2*q,2)}, {vr(T+8,2)} op_sel_hi:[1,0]" for q in range(4)]
    X = [f"v_cos_f32 v{T+e}, v{T+e}" for e in range(8)]
    V = [f"v_cvt_pk_bf16_f32 v{O+q}, v{T+2*q}, v{T+2*q+1}" for q in range(4)]
    return L + P + X[:4] + [X[4], V[0], X[5], X[6], V[1], X[7], V[2], V[3]]

def gseed(sn, C, T, F):
    L = [f"v_cvt_f32_u32 v{T}, s{sn}", f"v_fma_f32 v{T}, v{C}, v{T}, v{C+1}"]
    L += [f"v_pk_add_f32 {vr(F+2*q,2)}, {vr(C+2+2*q,2)}, {vr(T,2)} op_sel_hi:[1,0]" for q in range(4)]
    return L + [f"v_cos_f32 v{F+e}, v{F+e}" for e in range(8)]
def gstep(M, Fp, Fc):
    return [f"v_pk_fma_f32 {vr(Fp+2*q,2)}, {vr(Fc+2*q,2)}, {vr(M,2)}, {vr(Fp+2*q,2)} op_sel_hi:[1,0,1] neg_lo:[0,0,1] neg_hi:[0,0,1]" for q in range(4)]
def gpack(O, F): return [f"v_cvt_pk_bf16_f32 v{O+q}, v{F+2*q}, v{F+2*q+1}" for q in range(4)]
def gmul(M, C, n): return [f"v_mul_f32 v{M}, {f32hex(float(n))}, v{C}", f"v_cos_f32 v{M}, v{M}", f"v_add_f32 v{M}, v{M}, v{M}"]

def engineG(k, mode, sid=2, hook=None):
    p0 = mode == 'p0'
    stp = Stamper(k); stp("start")
    k(f"s_load_dwordx2 s[4:5], s[0:1], {0 if p0 else 40}")
    k(f"s_load_dwordx2 s[6:7], s[0:1], 64")
    if not p0:
        k(f"s_and_b32 s24, s{sid}, 7"); k(f"s_lshr_b32 s25, s{sid}, 3")
        k("s_cmp_lt_u32 s25, 8"); k("s_cselect_b32 s20, s24, s25"); k("s_cselect_b32 s21, s25, s24")
    else:
        k(f"s_and_b32 s24, s{sid}, 7"); k(f"s_bfe_u32 s25, s{sid}, 0x20003")
        k("s_lshl_b32 s20, s24, 2"); k("s_add_u32 s20, s20, s25"); k(f"s_lshr_b32 s21, s{sid}, 5")
    k("v_lshrrev_b32 v1, 6, v0"); k("v_and_b32 v2, 63, v0")
    k("v_readfirstlane_b32 s22, v1")
    k("v_and_b32 v3, 15, v0"); k("v_bfe_u32 v4, v0, 4, 2"); k("v_lshlrev_b32 v5, 4, v2")
    k("s_sub_u32 s37, s21, 5"); k("s_cmp_lt_u32 s21, 5"); k("s_cselect_b32 s37, s21, s37")
    k("s_lshl_b32 s27, s37, 7"); k("s_add_u32 s36, s27, 640")
    VA = 16; VB = 96; VL = 156; VH = 176; VG = 196
    k("s_lshl_b32 s25, s20, 6"); k("s_lshl_b32 s26, s22, 4"); k("s_add_u32 s25, s25, s26")
    k("v_lshrrev_b32 v1, 3, v2")
    k("v_xor_b32 v11, v1, v2"); k("v_and_b32 v11, 7, v11"); k("v_lshlrev_b32 v11, 4, v11")
    def rowof(vd, vp):
        if p0:
            n1_of_p(k, vd, vp, 8, 9)
        else:
            k(f"v_lshrrev_b32 v8, 4, v{vp}"); k("v_mul_u32_u24 v8, 20, v8")
            k(f"v_and_b32 v9, 3, v{vp}"); k("v_add_u32 v8, v8, v9")
            k(f"v_bfe_u32 v10, v{vp}, 3, 1"); k("v_lshl_add_u32 v8, v10, 2, v8")
            k(f"v_bfe_u32 v10, v{vp}, 2, 1"); k("v_lshl_add_u32 v8, v10, 3, v8")
            k(f"v_subrev_u32 v10, 512, v{vp}"); k("v_lshrrev_b32 v10, 2, v10")
            k("v_mul_u32_u24 v10, 20, v10"); k("v_add3_u32 v10, v10, v9, 16")
            k(f"v_cmp_gt_u32 vcc, 512, v{vp}"); k(f"v_cndmask_b32 v{vd}, v10, v8, vcc")
    k("v_add_u32 v6, s25, v1"); rowof(7, 6)
    k("v_mul_u32_u24 v7, 1280, v7"); k("v_add_u32 v7, v7, v11")
    if p0: k(f"v_add_u32 v12, {1280-1024}, v7")
    else:
        k(f"s_movk_i32 s24, {4*1280-1024}"); k("s_cmp_lt_u32 s25, 512"); k(f"s_cselect_b32 s24, s24, {40*1280-1024}"); k("v_add_u32 v12, s24, v7")
    k("s_mul_i32 s23, s22, 6144"); k(f"s_add_u32 s23, s23, 51200")
    k("s_waitcnt lgkmcnt(0)"); stp("karg")
    srd(k, 12, 4, 0, 2048*1280 if p0 else 640*1280)
    vm = VM()
    def unit(n):
        sreg = 36 if n % 2 else 27
        L = []
        if n >= 2: L += [f"s_add_u32 s{sreg}, s{sreg}, 128", f"s_cmp_eq_u32 s{sreg}, 1280", f"s_cselect_b32 s{sreg}, 0, s{sreg}"]
        L += [f"s_add_u32 m0, s23, {(n % 3)*2048}", f"buffer_load_dwordx4 v7, s[12:15], s{sreg} offen lds",
              f"buffer_load_dwordx4 v12, s[12:15], s{sreg} offen offset:1024 lds"]
        for x in L: k(x)
        vm.issue(n); vm.issue(n)
    for n in range(3): unit(n)
    C1 = VB; C2 = VB+10; T = VB+20; O = VB+32; F0 = VB+40; F1 = VB+48; M = VB+56
    k("v_lshlrev_b32 v8, 3, v4"); k("v_cvt_f32_u32 v8, v8")
    k("s_mul_i32 s24, s21, 80"); k("s_add_u32 s26, s24, s26"); k("v_add_u32 v9, s26, v3")
    gconst(k, 9, 8, C1, 2)
    k("s_add_u32 s24, s24, 64"); k("v_add_u32 v9, s24, v3")
    gconst(k, 9, 8, C2, 0)
    k("s_lshl_b32 s38, s37, 6"); k("s_add_u32 s39, s38, 32")
    k("s_lshl_b32 s26, s22, 10"); k("v_add_u32 v11, s26, v5")
    for x in gseed(38, C1, T, F0) + gseed(39, C1, T+2, F1) + gmul(M, C1, 32): k(x)
    for i in range(10):
        F = (F0, F1)[i % 2]
        if i >= 2:
            for x in gstep(M, F, (F1, F0)[i % 2]): k(x)
        for x in gpack(O+4*(i % 2), F): k(x)
        k(f"ds_write_b128 v11, {vr(O+4*(i % 2),4)} offset:{i*5120}")
    k("s_mov_b32 s39, s22")
    l2 = k.lab('g'); k(f"{l2}:")
    k("s_min_u32 s40, s39, 9"); k("s_mul_i32 s41, s40, 5120"); k("v_add_u32 v11, s41, v5")
    k("s_lshl_b32 s40, s40, 5"); k("s_add_u32 s40, s40, s38")
    g = gfrag(40, C2, T, O)
    for x in g[:2] + [f"v_fract_f32 v{T+8}, v{T+8}"] + g[2:]: k(x)
    k(f"ds_write_b128 v11, {vr(O,4)} offset:4096")
    k("s_add_u32 s39, s39, 4"); k("s_cmp_lt_u32 s39, 12"); k(f"s_cbranch_scc1 {l2}")
    stp("gen")
    k("v_xor_b32 v8, v4, v3"); k("v_and_b32 v8, 7, v8"); k("v_lshl_add_u32 v8, v3, 3, v8"); k("v_lshl_add_u32 v8, v8, 4, s23")
    k("v_xor_b32 v9, 64, v8")
    k("v_add_u32 v6, s25, v3")
    E0 = 200; E1 = 202; S0 = 204; S1 = 14
    k(f"v_mov_b32 v{E0}, {f32hex(SC)}"); k(f"v_lshlrev_b32 v{S0}, 30, v3"); k(f"v_and_b32 v{S0}, 0x80000000, v{S0}"); k(f"v_xor_b32 v{S0}, v{E0}, v{S0}")
    k("s_cmp_eq_u32 s21, 0"); k("s_cselect_b32 s30, 0, 99"); k("s_cselect_b32 s31, 1, 99")
    k(f"v_mov_b32 v1, {f32hex(np.sqrt(1/640))}"); k("v_cmp_eq_u32 vcc, s30, v3")
    k(f"v_cndmask_b32 v{E1}, v{E0}, v1, vcc"); k(f"v_cndmask_b32 v{S1}, v{S0}, v1, vcc")
    k(f"v_mov_b32 v1, {f32hex(1/640)}"); k("v_cmp_eq_u32 vcc, s31, v3")
    k(f"v_cndmask_b32 v{E1}, v{E1}, v1, vcc"); k(f"v_cndmask_b32 v{S1}, v{S1}, v1, vcc")
    if p0:
        k("v_lshrrev_b32 v1, 3, v2"); k("v_and_b32 v13, 7, v2"); k("v_lshlrev_b32 v10, 12, v1"); k("v_lshl_add_u32 v10, v13, 4, v10")
        k("s_mul_i32 s28, s21, 80*4096"); k("s_lshl_b32 s29, s20, 7"); k("s_add_u32 s28, s28, s29"); k("s_lshl_b32 s29, s22, 15"); k("s_add_u32 s28, s28, s29")
        k(f"s_add_u32 s28, s28, {XA}")
        k("s_lshl_b32 s29, s22, 5"); k("s_add_u32 s29, s29, s23"); k("v_lshl_add_u32 v201, v3, 2, v4"); k("v_lshl_add_u32 v201, v201, 3, s29")
        k("v_bfe_u32 v13, v2, 1, 2"); k("v_mul_u32_u24 v13, 6176, v13"); k("v_lshl_add_u32 v13, v1, 5, v13"); k("v_and_b32 v1, 1, v2"); k("v_lshl_add_u32 v13, v1, 4, v13")
        k("s_lshl_b32 s29, s22, 8"); k("s_add_u32 s29, s29, 51200"); k("v_add_u32 v203, s29, v13")
    else:
        k("s_lshr_b32 s28, s25, 5"); k("s_mul_i32 s28, s28, 5120"); k("s_mul_i32 s29, s21, 102400"); k("s_add_u32 s28, s28, s29")
        k("s_and_b32 s29, s22, 1"); k("s_lshl_b32 s29, s29, 9"); k("s_add_u32 s28, s28, s29"); k(f"s_add_u32 s28, s28, {WOP}")
        k("v_lshrrev_b32 v10, 1, v4"); k("v_lshlrev_b32 v10, 8, v10"); k("v_lshl_add_u32 v10, v3, 4, v10")
        k("v_and_b32 v1, 1, v4"); k("v_lshl_add_u32 v10, v1, 3, v10")
    srd(k, 16, 6, 0, WS_END)
    def breads(i): return [f"ds_read_b128 {vr(VB+20*(i % 3)+4*jl,4)}, v5 offset:{i*5120+jl*1024}" for jl in range(5)]
    def areads(n):
        return [f"ds_read_b128 {vr(VA+8*(2*(n >> 1)+h)+4*(n & 1),4)}, v{8+h} offset:{(n % 3)*2048}" for h in range(2)]
    lg = VM()
    def ds(x, tag): k(x); lg.issue(tag)
    def fetch(n):
        k(f"s_waitcnt vmcnt({vm.wait(lambda t: t == n)})")
        for x in areads(n): ds(x, ('a', n))
    def refill(n):
        if n+3 < 10:
            k(f"s_waitcnt lgkmcnt({lg.wait(lambda t: t == ('a', n))})"); unit(n+3)
        elif n+3 == 10 and hook:
            for h in hook(k):
                for x in h: k(x)
                vm.issue(98)
    k("s_waitcnt lgkmcnt(0)"); k("s_barrier"); stp("bar")
    for jl, x in enumerate(breads(0)): ds(x, ('b', 0, jl))
    fetch(0); fetch(1); stp("u1"); refill(0); refill(1)
    for jl, x in enumerate(breads(1)): ds(x, ('b', 1, jl))
    for i in range(10):
        nxt = breads(i+2) if i+2 < 10 else []
        n = i+2
        for jl in range(5):
            k(f"s_waitcnt lgkmcnt({lg.wait(lambda t: t == ('b', i, jl) or t == ('a', i | 1))})")
            b = vr(VB+20*(i % 3)+4*jl, 4)
            k(f"v_mfma_f32_16x16x32_bf16 {vr(VL+4*jl,4)}, {vr(VA+8*i,4)}, {b}, {'0' if i == 0 else vr(VL+4*jl,4)}")
            if nxt: ds(nxt[jl], ('b', i+2, jl))
            k(f"v_mfma_f32_16x16x32_bf16 {vr(VH+4*jl,4)}, {vr(VA+8*i+4,4)}, {b}, {'0' if i == 0 else vr(VH+4*jl,4)}")
            if n < 10 and jl == 1: fetch(n)
            if n < 10 and jl == 3: refill(n)
        if p0:
            ls = k.lab('s'); k("s_cmp_lg_u32 s21, 0"); k(f"s_cbranch_scc1 {ls}")
            for h in range(2):
                a = vr(VA+8*i+4*h, 4)
                k(f"v_mfma_f32_16x16x32_bf16 {vr(VG,4)}, {a}, {a}, {'0' if (i, h) == (0, 0) else vr(VG,4)}")
            k(f"{ls}:")
        if i in (1, 3, 5, 7): stp(f"i{i}")
    stp("loop")
    T = VA
    lend = k.lab('end')
    for jl in range(5):
        s = E1 if jl == 0 else E0
        for h in range(2):
            d = vr(VL+4*jl+2*h, 2)
            k(f"v_pk_mul_f32 {d}, {d}, {vr(s,2)} op_sel_hi:[1,0]")
    for jl in range(5):
        s = E1 if jl == 0 else E0
        for h in range(2):
            d = vr(VL+4*jl+2*h, 2)
            k(f"v_pk_fma_f32 {d}, {vr(VH+4*jl+2*h,2)}, {vr(S1 if jl == 0 else S0,2)}, {d} op_sel_hi:[1,0,1]")
    for jl in range(5):
        if p0 and jl == 0:
            for r in range(4): k(f"v_mov_b32 v{VH+r}, v{VL+r}")
            for r in range(4): k(f"v_cndmask_b32 v{VL+r}, v{VL+r}, 0, vcc")
        k(f"v_cvt_pk_bf16_f32 v{T+2*jl}, v{VL+4*jl}, v{VL+4*jl+1}")
        k(f"v_cvt_pk_bf16_f32 v{T+2*jl+1}, v{VL+4*jl+2}, v{VL+4*jl+3}")
        if p0:
            k(f"ds_write_b64 v201, {vr(T+2*jl,2)} offset:{jl*512}")
        else:
            if jl == 4: k("s_add_u32 s28, s28, 4096")
            k(f"buffer_store_dwordx2 {vr(T+2*jl,2)}, v10, s[16:19], s28 offen offset:{(jl % 4)*1024}")
    if p0:
        k("s_waitcnt lgkmcnt(0)"); k("s_barrier")
        for q in range(2): k(f"ds_read_b128 {vr(T+4*q,4)}, v203 offset:{q*1024}")
        l3 = k.lab('q'); k("s_cmp_ge_u32 s22, 2"); k(f"s_cbranch_scc1 {l3}")
        k(f"ds_read_b128 {vr(T+8,4)}, v203 offset:2048"); k("s_add_u32 s29, s28, 262144"); k("s_waitcnt lgkmcnt(0)")
        k(f"buffer_store_dwordx4 {vr(T+8,4)}, v10, s[16:19], s29 offen sc1")
        k(f"{l3}:")
        k("s_add_u32 s29, s28, 131072")
        k("s_waitcnt lgkmcnt(1)"); k(f"buffer_store_dwordx4 {vr(T,4)}, v10, s[16:19], s28 offen sc1")
        k("s_waitcnt lgkmcnt(0)"); k(f"buffer_store_dwordx4 {vr(T+4,4)}, v10, s[16:19], s29 offen sc1")
        k("s_cmp_lg_u32 s21, 0"); k(f"s_cbranch_scc1 {lend}")
        for r in range(4): k(f"v_mov_b32_dpp v{VH+4+r}, v{VH+r} row_newbcast:1 row_mask:0xf bank_mask:0xf")
        k("v_and_b32 v12, 3, v3")
        for r in range(1, 4):
            k(f"v_cmp_eq_u32 vcc, {r}, v12")
            k(f"v_cndmask_b32 v{VG}, v{VG}, v{VG+r}, vcc")
            k(f"v_cndmask_b32 v{VH+4}, v{VH+4}, v{VH+4+r}, vcc")
        k(f"v_mul_f32 v13, {f32hex(640.0)}, v{VH+4}")
        k(f"v_fma_f32 v14, -v13, v{VH+4}, v{VG}")
        k("v_max_f32 v14, 0, v14")
        k("v_lshrrev_b32 v12, 2, v3")
        k("v_cmp_eq_u32 vcc, v12, v4")
        k("v_lshlrev_b32 v15, 2, v6")
        k(f"s_mov_b32 s28, {SSQ0}"); k(f"s_mov_b32 s29, {DC0}")
        k("s_mov_b64 exec, vcc")
        k("buffer_store_dword v14, v15, s[16:19], s28 offen")
        k(f"buffer_store_dword v{VH+4}, v15, s[16:19], s29 offen")
    k(f"{lend}:")
    stp("st"); stp.flush()
    k("s_endpgm")

def gpg(k, sid=2):
    stride = 3840
    VDMA = 8; VTR = 12; FR = 32; AC = 80; WR = 144; C = 156; T = 166; VO = 176
    stp = Stamper(k); stp("start")
    k("s_load_dwordx2 s[4:5], s[0:1], 64")
    k("s_load_dwordx2 s[6:7], s[0:1], 32")
    k("v_lshrrev_b32 v1, 6, v0"); k("v_and_b32 v2, 63, v0")
    k("v_readfirstlane_b32 s22, v1")
    k(f"s_and_b32 s20, s{sid}, 31"); k(f"s_lshr_b32 s21, s{sid}, 5")
    lgo = k.lab('go'); k("s_cmp_lt_u32 s20, 30"); k(f"s_cbranch_scc1 {lgo}"); k("s_endpgm"); k(f"{lgo}:")
    k("s_lshl_b32 s23, s21, 2"); k("s_add_u32 s23, s23, s22")
    k("v_lshrrev_b32 v4, 4, v2"); k("v_and_b32 v5, 15, v2")
    k("v_lshlrev_b32 v6, 2, v4"); k("v_xor_b32 v6, v6, v5")
    k("v_lshrrev_b32 v7, 3, v6"); k("v_mul_u32_u24 v7, 320, v7"); k("s_lshl_b32 s46, s21, 6"); k("v_add3_u32 v7, v7, v4, s46")
    k("v_and_b32 v6, 7, v6"); k("v_lshlrev_b32 v6, 4, v6")
    k(f"v_mul_u32_u24 v7, {stride}, v7"); k(f"v_add_u32 v{VDMA}, v6, v7")
    for q in range(1, 4): k(f"v_add_u32 v{VDMA+q}, {4*stride-1024}, v{VDMA+q-1}")
    k("s_lshl_b32 s24, s20, 7"); k(f"s_mul_i32 s26, s22, {16*stride}"); k("s_add_u32 s24, s24, s26")
    k("s_lshl_b32 s26, s22, 12")
    k("s_waitcnt lgkmcnt(0)")
    stp("karg")
    srd(k, 8, 6, 0, 640*3840)
    def dma(c):
        if c:
            k(f"v_add_u32 v{VDMA}, {64*stride}, v{VDMA}"); k(f"v_subrev_u32 v{VDMA+1}, {640*stride}, v{VDMA}"); k(f"v_min_u32 v{VDMA}, v{VDMA}, v{VDMA+1}")
            for q in range(1, 4): k(f"v_add_u32 v{VDMA+q}, {4*stride-1024}, v{VDMA+q-1}")
        k(f"s_add_u32 m0, s26, {c*16384}")
        for q in range(4): k(f"buffer_load_dwordx4 v{VDMA+q}, s[8:11], s24 offen offset:{q*1024} lds")
    for c in range(2): dma(c)
    k("v_lshrrev_b32 v6, 2, v5"); k("v_lshrrev_b32 v7, 5, v2")
    k(f"v_lshl_add_u32 v1, v7, 3, v6"); k("v_lshlrev_b32 v1, 8, v1")
    k("v_and_b32 v21, 3, v5"); k("v_lshl_add_u32 v1, v21, 3, v1")
    k("v_and_b32 v21, 1, v4"); k("v_lshl_add_u32 v1, v21, 5, v1")
    for t in range(4):
        k(f"v_xor_b32 v21, {t}, v6"); k(f"v_lshl_add_u32 v{VTR+t}, v21, 6, v1")
    k("v_and_b32 v1, 31, v2"); k("s_lshl_b32 s28, s23, 5"); k("v_add_u32 v21, s28, v1")
    k("v_lshlrev_b32 v22, 3, v7"); k("v_cvt_f32_u32 v22, v22")
    gconst(k, 21, 22, C, 1)
    F0 = 180; F1 = 188; M = 196
    k("s_add_u32 s47, s46, 16")
    for x in gseed(46, C, T, F0) + gseed(47, C, T+2, F1) + gmul(M, C, 16): k(x)
    def gen(s):
        F = (F0, F1)[s % 2]
        return (gstep(M, F, (F1, F0)[s % 2]) if s >= 2 else []) + gpack(WR+4*(s % 3), F)
    for s in range(2):
        for x in gen(s): k(x)
    srd(k, 16, 4, 0, WS_END)
    k(f"s_mov_b32 s30, {f32hex(SC)}"); k("s_cmp_lt_u32 s20, 10"); k(f"s_cselect_b32 s30, {f32hex(CS*SC)}, s30")
    k("s_cmp_lt_u32 s20, 20"); k("s_cselect_b32 s31, 1, 0")
    k("s_mul_i32 s32, s20, 205"); k("s_lshr_b32 s32, s32, 11")
    k("s_mul_i32 s33, s32, 10"); k("s_sub_u32 s33, s20, s33"); k("s_lshl_b32 s33, s33, 6")
    k("s_mul_i32 s32, s32, 20*40960"); k("s_lshl_b32 s34, s23, 11"); k("s_add_u32 s32, s32, s34"); k(f"s_add_u32 s32, s32, {GP}")
    for t in range(2):
        k(f"s_add_u32 s34, s33, {32*t}")
        k("v_add_u32 v24, s34, v1")
        div20(k, 25, 26, 24)
        k("v_lshrrev_b32 v27, 1, v25"); k("v_and_b32 v28, 1, v25"); k("v_lshl_add_u32 v28, v28, 4, v26")
        k("v_lshrrev_b32 v29, 3, v25"); k("v_add_u32 v29, 16, v29"); k("v_and_b32 v30, 7, v25"); k("v_lshl_add_u32 v30, v30, 2, v26"); k("v_subrev_u32 v30, 16, v30")
        k("v_cmp_gt_u32 vcc, 16, v26")
        k("v_cndmask_b32 v27, v29, v27, vcc"); k("v_cndmask_b32 v28, v30, v28, vcc")
        k("v_lshrrev_b32 v29, 5, v24")
        k("v_cmp_eq_u32 vcc, 1, s31")
        k("v_cndmask_b32 v27, v29, v27, vcc"); k("v_cndmask_b32 v28, v1, v28, vcc")
        k("v_mul_u32_u24 v27, 40960, v27"); k("v_lshl_add_u32 v27, v28, 4, v27"); k(f"v_lshl_add_u32 v{VO+t}, v7, 9, v27")
    k(f"v_mov_b32 v{VO+3}, s30"); k(f"v_mul_f32 v24, {f32hex(np.sqrt(0.5))}, v{VO+3}")
    k("v_add_u32 v25, s23, v7"); k("v_cmp_eq_u32 vcc, 0, v25"); k(f"v_cndmask_b32 v{VO+2}, v{VO+3}, v24, vcc"); k("v_mov_b32 v26, s30")
    def reads(s):
        c, st = s // 4, s % 4
        o = (c % 4)*16384 + st*4096
        L = [f"ds_read_b64_tr_b16 {vr(FR+16*(s % 3)+4*t+2*h,2)}, v{VTR+t} offset:{o + h*1024}" for t in range(4) for h in range(2)]
        if s == 16: L = [(f"v_add_u32 v{VTR+n//2}, 0x10000, v{VTR+n//2}\n" if n % 2 == 0 else "") + x for n, x in enumerate(L)]
        return L
    stp("pre")
    for c in range(2, 5): dma(c)
    stp("issued")
    k("s_waitcnt vmcnt(16)"); k("s_barrier"); stp("c0")
    for x in reads(0) + reads(1): k(x)
    for s in range(20):
        c, st = s // 4, s % 4
        nxt = reads(s+2) if s+2 < 20 else []
        g = gen(s+2) if s+2 < 20 else []
        w = vr(WR+4*(s % 3), 4)
        for t in range(4):
            lg = 14 if nxt else (14 if s == 18 else 6) - 2*t
            k(f"s_waitcnt lgkmcnt({lg})")
            f = vr(FR+16*(s % 3)+4*t, 4)
            k(f"v_mfma_f32_32x32x16_bf16 {vr(AC+16*t,16)}, {w}, {f}, {'0' if s == 0 else vr(AC+16*t,16)}")
            if t == 0 and st == 2 and nxt:
                k(f"s_waitcnt vmcnt({4*(3-c)})"); k("s_barrier"); stp(f"c{c+1}")
            for x in nxt[2*t:2*t+2]: k(x)
            n = 2
            for x in g[:n]: k(x)
            g = g[n:]
    stp("loop")
    TT = FR
    for t in range(2):
        for q in range(8):
            d = vr(AC+16*t+2*q, 2)
            k(f"v_pk_add_f32 {d}, {d}, {vr(AC+16*t+32+2*q,2)}" + (" neg_lo:[0,1] neg_hi:[0,1]" if q % 2 else ""))
        for q in range(8):
            d = vr(AC+16*t+2*q, 2)
            k(f"v_pk_mul_f32 {d}, {d}, {vr(VO+2,2)}" if q == 0 else f"v_pk_mul_f32 {d}, {d}, v[26:27] op_sel_hi:[1,0]")
        for q in range(8): k(f"v_cvt_pk_bf16_f32 v{TT+8*t+q}, v{AC+16*t+2*q}, v{AC+16*t+2*q+1}")
        k(f"buffer_store_dwordx4 {vr(TT+8*t,4)}, v{VO+t}, s[16:19], s32 offen")
        k(f"buffer_store_dwordx4 {vr(TT+8*t+4,4)}, v{VO+t}, s[16:19], s32 offen offset:1024")
    stp("st"); stp.flush(); k("s_endpgm")

def pfrole(k, sid=2, wo=False):
    k("s_load_dwordx4 s[4:7], s[0:1], 40")
    k("s_load_dwordx2 s[8:9], s[0:1], 64")
    k(f"s_lshr_b32 s20, s{sid}, 3"); k(f"s_and_b32 s21, s{sid}, 7")
    k("v_lshlrev_b32 v1, 7, v0")
    getpc(k, 26, ".Ltabcf"); srd(k, 12, 26, 0, 20480)
    k("buffer_load_dword v2, v1, s[12:15], 0 offen")
    getpc(k, 26, ".Ltab3"); srd(k, 12, 26, 0, 819200)
    k("v_lshlrev_b32 v3, 12, v0")
    k("buffer_load_dword v2, v3, s[12:15], 0 offen")
    k("v_lshlrev_b32 v3, 20, v0"); k("v_min_u32 v3, 0x2000000, v3")
    k("s_mul_i32 s22, s21, 102400"); k("s_mul_i32 s23, s20, 51200"); k("s_add_u32 s22, s22, s23")
    k("s_waitcnt lgkmcnt(0)")
    srd(k, 12, 8, XB, WS_END-XB); srd(k, 16, 6, 0, 2048*1280)
    k("buffer_load_dword v2, v3, s[12:15], 0 offen")
    k("buffer_load_dword v2, v3, s[16:19], 0 offen")
    if wo:
        srd(k, 12, 4, 0, 640*1280)
        k("buffer_load_dword v2, v1, s[12:15], s22 offen")
        k("s_add_u32 s22, s22, 18432")
        k("buffer_load_dword v2, v1, s[12:15], s22 offen")
    k("s_endpgm")
```

```python
import sys, numpy as np
from asmlib import *
from layout import *

NAME = "interleave_layers__spectral_gfnet__softmax_full_mha__prompt"

def tables():
    L = ['.altmacro']
    ct = np.sqrt(2/D)*np.cos(2*np.pi*np.arange(D)/D); ct[160] = 0; ct[480] = 0
    vals = list(bf16bits(ct)) + list(bf16bits(np.array([1/np.sqrt(D), -1/np.sqrt(D), 0.0])))
    for i, v in enumerate(vals): L.append(f".set .Lzq{i}, {int(v)}")
    L.append(r"""
.macro zze1 zza
.short .Lzq\zza
.endm
.macro zzf zzn, zzj
.if \zzj >= 2
zze1 %(((\zzj/2)*\zzn + (\zzj%2)*160)%640)
.elseif \zzj == 0
zze1 %(640 + (\zzn%2))
.else
zze1 642
.endif
.endm
.macro zze8 zza,zzb,zzc,zzd,zze,zzf,zzg,zzh
.short .Lzq\zza,.Lzq\zzb,.Lzq\zzc,.Lzq\zzd,.Lzq\zze,.Lzq\zzf,.Lzq\zzg,.Lzq\zzh
.endm
.macro zzg1 zzk, zzp, zzn, zzj
.if \zzj >= 2
zze8 %((\zzk*(\zzn)+\zzp)%640), %((\zzk*(\zzn+1)+\zzp)%640), %((\zzk*(\zzn+2)+\zzp)%640), %((\zzk*(\zzn+3)+\zzp)%640), %((\zzk*(\zzn+4)+\zzp)%640), %((\zzk*(\zzn+5)+\zzp)%640), %((\zzk*(\zzn+6)+\zzp)%640), %((\zzk*(\zzn+7)+\zzp)%640)
.elseif \zzj == 0
zze8 640,641,640,641,640,641,640,641
.else
zze8 642,642,642,642,642,642,642,642
.endif
.endm
.macro zzg3 zzk, zzn
.if \zzk > 0
zze8 %((\zzk*\zzn)%640), %((\zzk*\zzn+160)%640), %(((\zzk+1)*\zzn)%640), %(((\zzk+1)*\zzn+160)%640), %(((\zzk+4)*\zzn)%640), %(((\zzk+4)*\zzn+160)%640), %(((\zzk+5)*\zzn)%640), %(((\zzk+5)*\zzn+160)%640)
.else
zze8 %(640+(\zzn%2)), 642, %(((\zzk+1)*\zzn)%640), %(((\zzk+1)*\zzn+160)%640), %(((\zzk+4)*\zzn)%640), %(((\zzk+4)*\zzn+160)%640), %(((\zzk+5)*\zzn)%640), %(((\zzk+5)*\zzn+160)%640)
.endif
.endm
.p2align 8
.Ltab3:
.set .Lq, 0
.rept 51200
zzg3 %(16*((.Lq/320)%20) + 8*((.Lq/32)%2) + 2*((.Lq/16)%2)), %(80*(.Lq/6400) + (1-((.Lq/64)%5)/4)*(32*(((.Lq/64)%5)/2) + 8*((.Lq%16)/4) + 4*(((.Lq/64)%5)%2) + .Lq%4) + (((.Lq/64)%5)/4)*(64 + .Lq%16))
.set .Lq, .Lq+1
.endr
.noaltmacro
""")
    return "\n".join(L)

STAMPS = False
STAMP_WS = 0x3000000
def stamp(k, i):
    if not STAMPS: return
    if i == 0:
        k("s_memrealtime s[62:63]")
    k(f"s_memtime {sr(64+2*i,2)}")
def stamp_flush(k, n, slot):
    if not STAMPS: return
    k("s_memrealtime s[60:61]")
    k("s_load_dwordx2 s[58:59], s[0:1], 64")
    k("s_mov_b64 exec, -1")
    k("s_waitcnt lgkmcnt(0)")
    k("v_lshrrev_b32 v1, 6, v0")
    k("v_lshlrev_b32 v1, 6, v1")
    k(f"s_lshl_b32 s57, s2, 9")
    k(f"s_add_u32 s57, s57, {STAMP_WS + slot*0x40000}")
    k("v_add_u32 v1, s57, v1")
    k("v_mov_b32 v2, s62"); k("global_store_dword v1, v2, s[58:59]")
    k("v_mov_b32 v2, s60"); k("global_store_dword v1, v2, s[58:59] offset:4")
    for i in range(n):
        k(f"v_mov_b32 v{3+i}, s{64+2*i}"); k(f"global_store_dword v1, v{3+i}, s[58:59] offset:{8+4*i}")

class Stamper:
    on = False
    slots = {}
    def __init__(self, k):
        self.k = k; self.n = 0; self.names = []
    def __call__(self, name):
        if not Stamper.on: return
        k = self.k
        if self.n == 0: k("s_memrealtime s[62:63]")
        k(f"s_memtime {sr(64+2*self.n,2)}"); k("s_waitcnt lgkmcnt(0)")
        self.names.append(name); self.n += 1
        assert self.n <= 14
    def flush(self, n=None):
        if not Stamper.on: return
        k = self.k
        k("s_waitcnt vmcnt(0)"); self("drain")
        slot = Stamper.slots.setdefault(getattr(k, 'role', k.name), (len(Stamper.slots), list(self.names)))[0]
        k("s_memrealtime s[60:61]")
        k("s_load_dwordx2 s[58:59], s[0:1], 64")
        k("s_mov_b64 exec, -1")
        k("s_waitcnt lgkmcnt(0)")
        k("v_lshrrev_b32 v1, 6, v0"); k("v_lshlrev_b32 v1, 6, v1")
        k(f"s_lshl_b32 s57, s2, 9"); k(f"s_add_u32 s57, s57, {STAMP_WS + slot*0x80000}")
        k("v_add_u32 v1, s57, v1")
        k("v_mov_b32 v2, s62"); k("global_store_dword v1, v2, s[58:59]")
        k("v_mov_b32 v2, s60"); k("global_store_dword v1, v2, s[58:59] offset:4")
        for i in range(self.n):
            k(f"v_mov_b32 v{3+i}, s{64+2*i}"); k(f"global_store_dword v1, v{3+i}, s[58:59] offset:{8+4*i}")
        self.n -= 1; self.names.pop()

def getpc(k, s, label):
    k(f"s_getpc_b64 {sr(s,2)}")
    k(f"s_add_u32 s{s}, s{s}, {label}@rel32@lo+4")
    k(f"s_addc_u32 s{s+1}, s{s+1}, {label}@rel32@hi+12")

def pf_code(k, nthr, s=44, v=1, vd=2):
    getpc(k, s, ".Ltext0")
    k(f"s_mov_b32 s{s+2}, .Ltext1-.Ltext0"); k(f"s_mov_b32 s{s+3}, 0x00020000")
    k(f"v_lshlrev_b32 v{v}, 7, v0")
    n = 65536 // (nthr*128)
    for j in range(n):
        if j: k(f"v_add_u32 v{v}, {nthr*128}, v{v}")
        k(f"buffer_load_dword v{vd+j}, v{v}, {sr(s,4)}, 0 offen")
    return n

def pf_text(sid, nthr, s, v, vd):
    sh = {256: 15, 512: 16}[nthr]
    return [[f"s_getpc_b64 {sr(s,2)}", f"s_add_u32 s{s}, s{s}, .Ltext0@rel32@lo+4", f"s_addc_u32 s{s+1}, s{s+1}, .Ltext0@rel32@hi+12",
             f"s_lshr_b32 s{s+3}, s{sid}, 3", f"s_lshl_b32 s{s+3}, s{s+3}, {sh}", f"v_lshl_add_u32 v{v}, v0, 7, s{s+3}",
             f"s_mov_b32 s{s+2}, .Ltext1-.Ltext0", f"s_mov_b32 s{s+3}, 0x00020000",
             f"buffer_load_dword v{vd}, v{v}, {sr(s,4)}, 0 offen"]]

def srd(k, s, base, off, size):
    k(f"s_add_u32 s{s}, s{base}, {off}")
    k(f"s_addc_u32 s{s+1}, s{base+1}, 0")
    k(f"s_mov_b32 s{s+2}, {size}")
    k(f"s_mov_b32 s{s+3}, 0x00020000")

def n1_of_p(k, vd, vp, t0, t1):
    k(f"v_and_b32 v{t0}, 3, v{vp}")
    k(f"v_bfe_u32 v{t1}, v{vp}, 2, 1")
    k(f"v_lshl_or_b32 v{t0}, v{t1}, 4, v{t0}")
    k(f"v_bfe_u32 v{t1}, v{vp}, 7, 2")
    k(f"v_lshl_or_b32 v{t0}, v{t1}, 2, v{t0}")
    k(f"v_bfe_u32 v{t1}, v{vp}, 9, 1")
    k(f"v_lshl_or_b32 v{t0}, v{t1}, 5, v{t0}")
    k(f"v_bfe_u32 v{t1}, v{vp}, 3, 4")
    k(f"v_lshl_or_b32 v{t0}, v{t0}, 5, v{t1}")
    k(f"v_lshrrev_b32 v{t1}, 10, v{vp}")
    k(f"v_lshl_or_b32 v{vd}, v{t1}, 4, v{t0}")

def engineA(k, mode, sid=2):
    aoff = {'p0': 0, 'p4': 64, 'wop': 40}[mode]
    stamp(k, 0)
    k(f"s_load_dwordx2 s[4:5], s[0:1], {aoff}")
    k(f"s_load_dwordx2 s[6:7], s[0:1], 64")
    if mode == 'wop':
        k(f"s_lshr_b32 s20, s{sid}, 3"); k(f"s_and_b32 s21, s{sid}, 7")
    else:
        k(f"s_and_b32 s24, s{sid}, 7"); k(f"s_lshr_b32 s25, s{sid}, 3")
        k("s_lshr_b32 s20, s24, 1"); k("s_lshl_b32 s20, s20, 3"); k("s_lshr_b32 s26, s25, 2"); k("s_add_u32 s20, s20, s26")
        k("s_and_b32 s21, s24, 1"); k("s_lshl_b32 s21, s21, 2"); k("s_and_b32 s26, s25, 3"); k("s_add_u32 s21, s21, s26")
    k("v_lshrrev_b32 v1, 6, v0")
    k("v_and_b32 v2, 63, v0")
    k("v_readfirstlane_b32 s22, v1")
    k("v_and_b32 v3, 15, v0")
    k("v_bfe_u32 v4, v0, 4, 2")
    k("v_lshlrev_b32 v5, 4, v2")
    k("s_mul_i32 s24, s21, 102400")
    k("s_mul_i32 s23, s22, 5120")
    VA = 16; VB = 96; VD = 136; VG = 156; VS = 160; VONE = 164; VRES = 168
    def dma(c):
        k(f"s_add_u32 m0, s23, {c*20480}")
        for f in range(4):
            k(f"buffer_load_dwordx4 v5, s[8:11], m0 offen offset:{f*1024} lds")
        k(f"s_add_u32 m0, s23, {c*20480+4096}")
        k(f"buffer_load_dwordx4 v5, s[8:11], m0 offen lds")
    static_b = mode in ('p0', 'wop')
    if static_b:
        getpc(k, 26, ".Ltab1")
        srd(k, 8, 26, "s24", 102400)
        for c in range(5): dma(c)
    k("s_lshl_b32 s25, s20, 6"); k("s_lshl_b32 s26, s22, 4"); k("s_add_u32 s25, s25, s26")
    k("v_add_u32 v6, s25, v3")
    if mode == 'p0':
        n1_of_p(k, 7, 6, 8, 9)
        k("v_mul_u32_u24 v7, 1280, v7"); k("v_lshl_add_u32 v7, v4, 4, v7")
    elif mode == 'p4':
        k("v_lshrrev_b32 v7, 5, v6"); k("v_mul_u32_u24 v7, 40960, v7"); k("v_lshl_add_u32 v7, v4, 9, v7")
        k("v_and_b32 v8, 31, v6"); k("v_lshl_add_u32 v7, v8, 4, v7")
    else:
        k("v_lshrrev_b32 v8, 4, v6")
        k("v_mul_u32_u24 v8, 20, v8")
        k("v_and_b32 v9, 3, v6"); k("v_add_u32 v8, v8, v9")
        k("v_bfe_u32 v10, v6, 3, 1"); k("v_lshl_add_u32 v8, v10, 2, v8")
        k("v_bfe_u32 v10, v6, 2, 1"); k("v_lshl_add_u32 v8, v10, 3, v8")
        k("v_subrev_u32 v10, 512, v6"); k("v_lshrrev_b32 v10, 2, v10")
        k("v_mul_u32_u24 v10, 20, v10"); k("v_add3_u32 v10, v10, v9, 16")
        k("v_cmp_gt_u32 vcc, 512, v6")
        k("v_cndmask_b32 v7, v10, v8, vcc")
        k("v_mul_u32_u24 v7, 1280, v7"); k("v_lshl_add_u32 v7, v4, 4, v7")
    for r in range(4): k(f"v_mov_b32 v{VONE+r}, 0x3f803f80")
    for r in range(28): k(f"v_mov_b32 v{VD+r}, 0")
    k("v_lshlrev_b32 v10, 12, v3"); k("v_lshl_add_u32 v10, v4, 3, v10")
    k("s_waitcnt lgkmcnt(0)")
    stamp(k, 1)
    if mode == 'p4':
        srd(k, 12, 6, AFO, 0x280000)
        k(f"s_add_u32 s24, s24, {WOP}")
        srd(k, 8, 6, "s24", 102400)
    else:
        srd(k, 12, 4, 0, 2048*1280 if mode == 'p0' else 640*1280)
    nvm = []
    cnt = 25 if static_b else 0
    for c in range(5):
        if not static_b:
            dma(c); cnt += 5
        for s in range(4*c, 4*c+4):
            if mode == 'p4':
                if s % 2 == 0: k(f"s_movk_i32 s27, {s*2048}" if s*2048 < 32768 else f"s_mov_b32 s27, {s*2048}")
                k(f"buffer_load_dwordx4 {vr(VA+4*s,4)}, v7, s[12:15], s27 offen offset:{(s%2)*2048}")
            else:
                k(f"buffer_load_dwordx4 {vr(VA+4*s,4)}, v7, s[12:15], 0 offen offset:{s*64}")
            cnt += 1
        nvm.append(cnt)
    k("s_mul_i32 s28, s21, 80*4096"); k("s_lshl_b32 s29, s25, 1"); k("s_add_u32 s28, s28, s29")
    if mode == 'p4':
        srd(k, 16, 6, XB, 0x280000)
        for jl in range(5):
            k(f"s_add_u32 s29, s28, {jl*65536}")
            k(f"buffer_load_dwordx2 {vr(VRES+2*jl,2)}, v10, s[16:19], s29 offen")
            cnt += 1
    total = cnt
    def breads(s):
        for jl in range(5):
            k(f"ds_read_b128 {vr(VB+20*(s%2)+4*jl,4)}, v{5 if s*5120+jl*1024 < 65536 else 11} offset:{(s*5120+jl*1024) % 65536}")
    k("v_add_u32 v11, 0x10000, v5")
    stamp(k, 2)
    k(f"s_waitcnt vmcnt({total-nvm[0]})"); k("s_barrier")
    stamp(k, 3)
    if STAMPS: k("s_waitcnt lgkmcnt(0)")
    breads(0)
    for s in range(20):
        if s+1 < 20:
            if (s+1) % 4 == 0:
                k(f"s_waitcnt vmcnt({total-nvm[(s+1)//4]})"); k("s_barrier")
                if STAMPS:
                    k("s_waitcnt lgkmcnt(0)"); stamp(k, 3+(s+1)//4); k("s_waitcnt lgkmcnt(0)")
            breads(s+1)
            k("s_waitcnt lgkmcnt(5)")
        else:
            k("s_waitcnt lgkmcnt(0)")
        for jl in range(5):
            k(f"v_mfma_f32_16x16x32_bf16 {vr(VD+4*jl,4)}, {vr(VA+4*s,4)}, {vr(VB+20*(s%2)+4*jl,4)}, {vr(VD+4*jl,4)}")
        if mode == 'p0':
            k(f"v_mfma_f32_16x16x32_bf16 {vr(VG,4)}, {vr(VA+4*s,4)}, {vr(VA+4*s,4)}, {vr(VG,4)}")
        if mode != 'p4':
            k(f"v_mfma_f32_16x16x32_bf16 {vr(VS,4)}, {vr(VA+4*s,4)}, {vr(VONE,4)}, {vr(VS,4)}")
    stamp(k, 8)
    T = VA
    lend = k.lab('end')
    if mode == 'p0':
        srd(k, 16, 6, XA, 0x280000)
        for jl in range(5):
            k(f"v_cvt_pk_bf16_f32 v{T+2*jl}, v{VD+4*jl}, v{VD+4*jl+1}")
            k(f"v_cvt_pk_bf16_f32 v{T+2*jl+1}, v{VD+4*jl+2}, v{VD+4*jl+3}")
            k(f"s_add_u32 s29, s28, {jl*65536}")
            k(f"buffer_store_dwordx2 {vr(T+2*jl,2)}, v10, s[16:19], s29 offen")
        k("s_cmp_lg_u32 s21, 0"); k(f"s_cbranch_scc1 {lend}")
        k("v_and_b32 v12, 3, v3")
        for r in range(1, 4):
            k(f"v_cmp_eq_u32 vcc, {r}, v12")
            k(f"v_cndmask_b32 v{VG}, v{VG}, v{VG+r}, vcc")
            k(f"v_cndmask_b32 v{VS}, v{VS}, v{VS+r}, vcc")
        k(f"v_mul_f32 v13, {float(1/640).hex() if False else hex(np.float32(1/640).view(np.uint32))}, v{VS}")
        k(f"v_fma_f32 v14, -v13, v{VS}, v{VG}")
        k("v_max_f32 v14, 0, v14")
        k("v_lshrrev_b32 v12, 2, v3")
        k("v_cmp_eq_u32 vcc, v12, v4")
        k("v_lshlrev_b32 v15, 2, v6")
        srd(k, 16, 6, SSQ0, 0x8000)
        k("s_mov_b64 exec, vcc")
        k("buffer_store_dword v14, v15, s[16:19], 0 offen")
        k(f"s_movk_i32 s29, {DC0-SSQ0}")
        k("buffer_store_dword v13, v15, s[16:19], s29 offen")
    elif mode == 'wop':
        k("s_lshr_b32 s29, s25, 5"); k("s_mul_i32 s29, s29, 5120"); k("s_add_u32 s29, s29, s24")
        k("s_and_b32 s30, s22, 1"); k("s_lshl_b32 s30, s30, 9"); k("s_add_u32 s29, s29, s30")
        k("v_lshrrev_b32 v12, 1, v4"); k("v_lshlrev_b32 v12, 8, v12"); k("v_lshl_add_u32 v12, v3, 4, v12")
        k("v_and_b32 v13, 1, v4"); k("v_lshl_add_u32 v12, v13, 3, v12")
        srd(k, 16, 6, WOP, 819200)
        k("s_cmp_eq_u32 s21, 0"); k("s_cselect_b32 s30, 1, 99")
        k("v_cmp_eq_u32 vcc, s30, v3")
        for r in range(4):
            k(f"v_mul_f32 v{VS+r}, {hex(np.float32(1/640).view(np.uint32))}, v{VS+r}")
            k(f"v_cndmask_b32 v{VD+r}, v{VD+r}, v{VS+r}, vcc")
        for jl in range(5):
            k(f"v_cvt_pk_bf16_f32 v{T+2*jl}, v{VD+4*jl}, v{VD+4*jl+1}")
            k(f"v_cvt_pk_bf16_f32 v{T+2*jl+1}, v{VD+4*jl+2}, v{VD+4*jl+3}")
            if jl == 4: k("s_add_u32 s29, s29, 4096")
            k(f"buffer_store_dwordx2 {vr(T+2*jl,2)}, v12, s[16:19], s29 offen offset:{(jl%4)*1024}")
    else:
        k("s_waitcnt vmcnt(0)")
        srd(k, 16, 6, XA, 0x280000)
        srd(k, 12, 6, SSQ2, 0x8000)
        k("s_cmp_eq_u32 s21, 0"); k("s_cselect_b32 s30, 1, 99")
        k("v_cmp_eq_u32 vcc, s30, v3")
        k("v_lshlrev_b32 v15, 4, v4"); k("s_lshl_b32 s31, s25, 2"); k(f"s_add_u32 s31, s31, {DCD-SSQ2}")
        lsk = k.lab('sk')
        k("s_cmp_lg_u32 s21, 0"); k(f"s_cbranch_scc1 {lsk}")
        k("s_mov_b64 exec, vcc")
        k(f"buffer_store_dwordx4 {vr(VD,4)}, v15, s[12:15], s31 offen")
        k("s_mov_b64 exec, -1")
        k(f"{lsk}:")
        for r in range(4): k(f"v_cndmask_b32 v{VD+r}, v{VD+r}, 0, vcc")
        for jl in range(5):
            for h in range(2):
                k(f"v_lshlrev_b32 v{T}, 16, v{VRES+2*jl+h}"); k(f"v_and_b32 v{T+1}, 0xffff0000, v{VRES+2*jl+h}")
                k(f"v_add_f32 v{VD+4*jl+2*h}, v{VD+4*jl+2*h}, v{T}"); k(f"v_add_f32 v{VD+4*jl+2*h+1}, v{VD+4*jl+2*h+1}, v{T+1}")
            k(f"v_cvt_pk_bf16_f32 v{T+4+2*jl}, v{VD+4*jl}, v{VD+4*jl+1}")
            k(f"v_cvt_pk_bf16_f32 v{T+4+2*jl+1}, v{VD+4*jl+2}, v{VD+4*jl+3}")
            k(f"s_add_u32 s29, s28, {jl*65536}")
            k(f"buffer_store_dwordx2 {vr(T+4+2*jl,2)}, v10, s[16:19], s29 offen")
        for r in range(4):
            k(f"v_mul_f32 v{VG+r}, v{VD+r}, v{VD+r}")
        for jl in range(1, 5):
            for r in range(4): k(f"v_fmac_f32 v{VG+r}, v{VD+4*jl+r}, v{VD+4*jl+r}")
        for sh in (8, 4, 2, 1):
            for r in range(4): k(f"v_add_f32_dpp v{VG+r}, v{VG+r}, v{VG+r} row_ror:{sh} row_mask:0xf bank_mask:0xf")
        for r in range(1, 4):
            k(f"v_cmp_eq_u32 vcc, {r}, v3")
            k(f"v_cndmask_b32 v{VG}, v{VG}, v{VG+r}, vcc")
        k("v_cmp_gt_u32 vcc, 4, v3")
        k("v_lshl_add_u32 v15, v3, 2, v15")
        k("s_lshl_b32 s31, s25, 2")
        k("s_mov_b64 exec, vcc")
        k(f"buffer_atomic_add_f32 v{VG}, v15, s[12:15], s31 offen")
    k(f"{lend}:")
    if STAMPS:
        stamp(k, 9); k("s_waitcnt vmcnt(0)"); stamp(k, 10)
    stamp_flush(k, 11, {'p0': 0, 'wop': 1, 'p4': 2}[mode])
    k("s_endpgm")

def simple_kernel(name, nwg, fn, vgprs=192, sgprs=96, agprs=0):
    k = Kern(name, vgprs=vgprs, sgprs=sgprs, agprs=agprs)
    lx = k.lab('x')
    k(f"s_cmp_ge_u32 s2, {nwg}"); k(f"s_cbranch_scc1 {lx}")
    fn(k)
    k(f"{lx}:"); k("s_endpgm")
    return k

ROLEINFO = {}
def merged(name, roles, vgprs=192, sgprs=96, nthr=256, pre=()):
    k = Kern(name, vgprs=vgprs, sgprs=sgprs)
    labs = [k.lab('role') for _ in roles]
    for x in pre: k(x)
    tot = 0
    for (rn, ns, na, fn), l in zip(roles, labs):
        k(f"s_cmp_lt_u32 s2, {na}"); k(f"s_cbranch_scc1 {l}"); k(f"s_sub_u32 s2, s2, {ns}")
        if na < ns:
            lx = k.lab('x'); k(f"s_cbranch_scc0 {lx}"); k("s_endpgm"); k(f"{lx}:")
        tot += ns
    k("s_endpgm")
    for (rn, ns, na, fn), l in zip(roles, labs):
        k(f"{l}:"); k.role = rn; ROLEINFO[rn] = (na, nthr//64); fn(k)
    k.total = tot
    return k

def blocker():
    k = Kern("blk", vgprs=8, sgprs=16)
    k("s_mov_b32 s3, 0")
    l = k.lab()
    k(f"{l}:"); k("s_sleep 127"); k("s_add_u32 s3, s3, 1"); k("s_cmp_lt_u32 s3, 60"); k(f"s_cbranch_scc1 {l}"); k("s_endpgm")
    return (k, 1, 64, 0)

def asmcheck(path):
    import subprocess
    r = subprocess.run(["clang", "-x", "assembler", "-target", "amdgcn-amd-amdhsa", "-mcpu=gfx950", "-c", path, "-o", "chk.o"], capture_output=True, text=True)
    if r.returncode: print(r.stderr[:1500]); raise SystemExit(1)

def build(launches, path, extra=''):
    hdr = [f"; @launch kernel={k.name}_kernel grid=({n},1,1) block=({b},1,1) lds={l}" for k, n, b, l in launches]
    seen = {}
    for k, *_ in launches: seen[k.name] = k
    txt = "\n".join(hdr) + '\n.amdgcn_target "amdgcn-amd-amdhsa--gfx950"\n.text\n.p2align 8\n.Ltext0:\n'
    txt += "".join(k.text() for k in seen.values()) + ".Ltext1:\n"
    txt += '.section .rodata,"a"\n' + "".join(k.desc() for k in seen.values()) + tables() + extra
    open(path, "w").write(txt)
    for k in seen.values(): print(k.name, k.maxregs, len(k.lines))
    asmcheck(path)

if __name__ == "__main__":
    STAMPS = "stamps" in sys.argv
    emp = simple_kernel("emp", 256, lambda k: None)
    p0 = simple_kernel("p0", 256, lambda k: engineA(k, 'p0'))
    wop = simple_kernel("wop", 80, lambda k: engineA(k, 'wop'))
    p4 = simple_kernel("p4", 256, lambda k: engineA(k, 'p4'))
    build([blocker(), (p0, 256, 256, 102400), (wop, 80, 256, 102400), (p4, 256, 256, 102400), (p0, 256, 256, 102400), (p4, 256, 256, 102400), (emp, 256, 256, 102400), (emp, 256, 256, 102400), (emp, 256, 256, 0), (emp, 1, 64, 0)], "t1.s")
```

```python
import sys
from gen import *
from cf import *
from eb import *
from attn import *
from ea import *
from eg import *
import json
Stamper.on = 'stamps' in sys.argv
VAR = [a[4:] for a in sys.argv if a.startswith('var=')]
VAR = VAR[0] if VAR else 'C'
if VAR == 'B':
    k0 = merged("k0", [("p0", 256, 256, lambda k: engineG(k, 'p0')), ("wtp", 160, 160, wtpack), ("wop", 80, 80, lambda k: engineG(k, 'wop')),
                   ("pf", 16, 16, pfrole)], vgprs=208, pre=pf_text(2, 256, 44, 206, 207)[0])
    k1 = merged("k1", [("gp", 160, 160, gpg), ("cf1", 320, 320, lambda k: colfilter(k, XA, XB, SSQ0, zero_ssq2=True, pfgp=False)), ("wot", 40, 40, wotpack)], vgprs=252)
    L0 = EG_LDS; L1 = GG_LDS
elif VAR == 'C':
    k0 = merged("k0", [("p0", 256, 256, lambda k: engineG(k, 'p0')), ("gp", 160, 160, gpg), ("wtp", 80, 80, wtpack4),
                   ("pf", 16, 16, lambda k: pfrole(k, wo=True))], vgprs=208, pre=pf_text(2, 256, 44, 206, 207)[0])
    k1 = merged("k1", [("wop", 80, 80, lambda k: engineG(k, 'wop')), ("cf1", 320, 320, lambda k: colfilter(k, XA, XB, SSQ0, zero_ssq2=True, pfgp=True)), ("wot", 40, 40, wotpack)], vgprs=252)
    L0 = GG_LDS; L1 = EG_LDS
elif VAR == 'D':
    k0 = merged("k0", [("gp", 160, 160, gpg), ("wtp", 80, 80, wtpack4),
                   ("pf", 16, 16, lambda k: pfrole(k, wo=True)), ("p0", 256, 256, lambda k: engineG(k, 'p0'))], vgprs=208, pre=pf_text(2, 256, 44, 206, 207)[0])
    k1 = merged("k1", [("cf1", 320, 320, lambda k: colfilter(k, XA, XB, SSQ0, zero_ssq2=True, pfgp=True)), ("wop", 80, 80, lambda k: engineG(k, 'wop')), ("wot", 40, 40, wotpack)], vgprs=252)
    L0 = GG_LDS; L1 = EG_LDS
p4 = merged("p4", [("p4", 256, 256, lambda k: engineA2(k, 'p4', hook=lambda k: pf_text(2, 256, 44, 180, 181)))])
fin = merged("fin", [("fin", 256, 256, lambda k: engineA2(k, 'fin'))])
cf2 = merged("cf2", [("cf2", 320, 320, lambda k: colfilter(k, XA, XB, SSQ2))], vgprs=252)
qkv = merged("qkv", [("qkv", 256, 256, lambda k: engineB(k, 'qkv', afx=True, hook=lambda k: pf_text(2, 256, 52, 17, 18)))], vgprs=256)
at = merged("at", [("at", 256, 256, attention)], vgprs=208, nthr=512, pre=["s_mov_b32 s42, 0", ".Lat_common:"])
at2 = Kern("at2", vgprs=208, sgprs=96); at2("s_mov_b32 s42, 1"); at2("s_branch .Lat_common")
L = [(k0, k0.total, 256, L0), (k1, k1.total, 256, L1), (qkv, 256, 256, EB_LDS), (at, 256, 512, AT_LDS), (p4, 256, 256, P4_LDS),
     (cf2, 320, 256, CF_LDS), (qkv, 256, 256, EB_LDS), (at2, 256, 512, AT_LDS), (fin, 256, 256, EA_LDS)]
if Stamper.on:
    build([blocker()] + L, "full_s.s", cf_tables())
    json.dump({n: [v[0], v[1], ROLEINFO[n][0], ROLEINFO[n][1]] for n, v in Stamper.slots.items()}, open("full_s.json", "w"))
elif 'v' in sys.argv:
    TAG = [a[4:] for a in sys.argv if a.startswith('tag=')]
    TAG = TAG[0] if TAG else VAR
    build(L, f"v{TAG}.s", cf_tables())
    build([blocker()] + L, f"v{TAG}_q.s", cf_tables())
else:
    build(L, f"../cdna_kernels/{NAME}.s", cf_tables())
    build([blocker()] + L, "full_q.s", cf_tables())
```
